```python
import torch

def _softmax(x, axis=-1):
    return torch.softmax(x, dim=axis)
def _gelu(x):
    return torch.nn.functional.gelu(x, approximate="tanh")
def _silu(x):
    return torch.nn.functional.silu(x)
def _sigmoid(x):
    return torch.sigmoid(x)
def _layernorm(x, axis=-1, eps=1e-5):
    m = x.mean(dim=axis, keepdim=True)
    v = x.var(dim=axis, keepdim=True, unbiased=False)
    return (x - m) / torch.sqrt(v + eps)
def _scatter_add(tgt, idx, src, axis=0):
    return tgt.clone().index_add_(axis, idx, src)
def _segment_sum(src, seg, n):
    out = torch.zeros((n,) + src.shape[1:], dtype=src.dtype)
    return out.index_add_(0, seg, src)
def _pad(x, pw):
    flat = tuple(v for pair in reversed(pw) for v in pair)
    return torch.nn.functional.pad(x, flat)

kernel_name = 'interleave_layers__ssm_conv_s4d__glu_gated_glu__prompt'

def setup_inputs():

    _w = (lambda a: (lambda t: t.to(torch.bfloat16) if t.is_floating_point() else t)(torch.as_tensor(a)))
    def _A_setup():
        Bsz, L, D, N = 1, 2048, 448, 256
        return {
            "u": _w((lambda *s: torch.randn(*s, dtype=torch.bfloat16) * 0.05)(Bsz, L, D)),
            "log_A_real": _w((lambda *s: torch.randn(*s, dtype=torch.bfloat16) * 3.2)(D, N) * 0.5),
            "A_imag": _w((lambda *s: torch.randn(*s, dtype=torch.bfloat16) * 0.1)(D, N) * 3.14),
            "C_real": _w((lambda *s: torch.randn(*s, dtype=torch.bfloat16) * 0.1)(D, N) / N ** 0.5),
            "C_imag": _w((lambda *s: torch.randn(*s, dtype=torch.bfloat16) * 0.1)(D, N) / N ** 0.5),
            "log_dt": _w((lambda *s: torch.randn(*s, dtype=torch.bfloat16) * 0.1)(D) * 0.5 - 4.0),
            "D_skip": _w((lambda *s: torch.randn(*s, dtype=torch.bfloat16) * 0.1)(D)),
        }
    _A_in = _A_setup()

    def _B_setup():
        B, S, D, F = 1, 2048, 448, 1792
        return {
            "x": _w((lambda *s: torch.randn(*s, dtype=torch.bfloat16) * 0.05)(B, S, D)),
            "w_gate": _w((lambda *s: torch.randn(*s, dtype=torch.bfloat16) * 0.05)(D, F)),
            "w_up": _w((lambda *s: torch.randn(*s, dtype=torch.bfloat16) * 0.05)(D, F)),
            "w_down": _w((lambda *s: torch.randn(*s, dtype=torch.bfloat16) * 0.05)(F, D)),
        }
    _B_in = _B_setup()

    return {
        "A_u": _A_in["u"],
        "A_log_A_real": _A_in["log_A_real"],
        "A_A_imag": _A_in["A_imag"],
        "A_C_real": _A_in["C_real"],
        "A_C_imag": _A_in["C_imag"],
        "A_log_dt": _A_in["log_dt"],
        "A_D_skip": _A_in["D_skip"],
        "B_x": _B_in["x"],
        "B_w_gate": _B_in["w_gate"],
        "B_w_up": _B_in["w_up"],
        "B_w_down": _B_in["w_down"],
    }

def reference(A_u, A_log_A_real, A_A_imag, A_C_real, A_C_imag, A_log_dt, A_D_skip, B_x, B_w_gate, B_w_up, B_w_down):
    def _A_ref(u, log_A_real, A_imag, C_real, C_imag, log_dt, D_skip):
        L = u.shape[1]
        dt = torch.exp(log_dt)
        A = -torch.exp(log_A_real) + 1j * A_imag
        C = (C_real + 1j * C_imag) * dt[:, None]
        pos = (lambda x, dt: x.to(dt))(torch.arange(L), log_dt.dtype)
        P = torch.exp((A * dt[:, None])[:, :, None] * pos[None, None, :])
        K = 2.0 * torch.einsum("dn,dnl->dl", C, P).real
        L2 = 2 * L
        u_t = (lambda x, *d: x.permute(*d))(u, 0, 2, 1)
        Kf = (lambda x, *a, **k: torch.fft.rfft(x.float(), *a, **k))(K, L2)
        Uf = (lambda x, *a, **k: torch.fft.rfft(x.float(), *a, **k))(u_t, L2)
        y = (lambda x, *a, **k: torch.fft.irfft(x, *a, **k).to(torch.bfloat16))(Uf * Kf[None, :, :], L2)[:, :, :L]
        y = (lambda x, *d: x.permute(*d))(y, 0, 2, 1)
        return y + u * D_skip[None, None, :]

    def _B_ref(x, w_gate, w_up, w_down):
        g = torch.einsum("bsd,df->bsf", x, w_gate)
        u = torch.einsum("bsd,df->bsf", x, w_up)
        h = _sigmoid(g) * u
        return torch.einsum("bsf,fd->bsd", h, w_down)

    x = A_u
    x = x + _A_ref(_layernorm(x, axis=-1), A_log_A_real, A_A_imag, A_C_real, A_C_imag, A_log_dt, A_D_skip)
    x = x + _B_ref(_layernorm(x, axis=-1), B_w_gate, B_w_up, B_w_down)
    x = x + _A_ref(_layernorm(x, axis=-1), A_log_A_real, A_A_imag, A_C_real, A_C_imag, A_log_dt, A_D_skip)
    x = x + _B_ref(_layernorm(x, axis=-1), B_w_gate, B_w_up, B_w_down)
    return x
```

```python
import re
MODS = re.compile(r'\b(op_sel_hi|op_sel|neg_lo|neg_hi|quad_perm|dst_sel|src0_sel|src1_sel|dst_unused|offset0|offset1|offset|row_shr|row_shl|row_ror|row_bcast|row_newbcast|bank_mask|row_mask|bound_ctrl|cbsz|abid|blgp|mul|div)(:(\[[^\]]*\]|\S+))')
FLAGS = re.compile(r'\b(sc0|sc1|nt|offen|idxen|lds|clamp|row_half_mirror|row_mirror|off)\b')
TRANS = ('v_exp_f32','v_log_f32','v_rcp_f32','v_rsq_f32','v_sqrt_f32','v_sin_f32','v_cos_f32','v_exp_f16','v_rcp_f16')
def regs_of(tok):
    t = tok.strip().lstrip('-').strip('|').strip()
    if t.startswith('abs(') or t.startswith('neg('): t = t[4:-1]
    m = re.fullmatch(r'([vas])\[(\d+):(\d+)\]', t)
    if m: return [(m.group(1), i) for i in range(int(m.group(2)), int(m.group(3))+1)]
    m = re.fullmatch(r'([vas])(\d+)', t)
    if m: return [(m.group(1), int(m.group(2)))]
    if t == 'vcc': return [('s','vcc_lo'),('s','vcc_hi')]
    if t in ('vcc_lo','vcc_hi'): return [('s',t)]
    if t == 'exec': return [('s','exec_lo'),('s','exec_hi')]
    if t in ('exec_lo','exec_hi'): return [('s',t)]
    if t == 'm0': return [('s','m0')]
    return []
class I:
    __slots__=('text','op','cls','dst','src','mods','ops','passes','isdpp','issdwa','states','srcC','srcAB','label','target','vmdst','lds','data')
def parse(line):
    s = line.split(';')[0].strip()
    i = I(); i.text = line; i.dst=[]; i.src=[]; i.passes=0; i.isdpp=False; i.issdwa=False; i.states=1
    i.srcC=[]; i.srcAB=[]; i.label=None; i.target=None; i.lds=False; i.data=[]; i.ops=[]; i.mods=''
    if not s or s.startswith('.') and not s.endswith(':'):
        i.cls='none'; i.op=''; i.states=0; return i
    if s.endswith(':'):
        i.cls='label'; i.op=''; i.label=s[:-1]; i.states=0; return i
    parts = s.split(None,1); op = parts[0]; rest = parts[1] if len(parts)>1 else ''
    i.op = op; i.mods = rest
    i.lds = bool(re.search(r'\blds\b', rest)) or '_lds_' in op
    i.isdpp = bool(re.search(r'quad_perm|row_shr|row_shl|row_ror|row_mirror|row_half_mirror|row_bcast|row_newbcast', rest))
    i.issdwa = 'sdwa' in op or 'dst_sel' in rest
    r = MODS.sub('', rest); r = FLAGS.sub('', r)
    ops = [t.strip() for t in r.split(',') if t.strip()]
    i.ops = ops
    R = [regs_of(t) for t in ops]
    base = re.sub(r'_(e32|e64|sdwa|dpp)$','',op)
    if op.startswith('v_mfma'):
        i.cls='mfma'; i.passes = 8 if '32x32' in op else 4
        if '4x4x4' in op: i.passes=2
        i.dst=R[0]; i.srcAB=R[1]+R[2]; i.srcC=R[3] if len(R)>3 else []; i.src=i.srcAB+i.srcC
    elif op.startswith('v_'):
        i.cls='valu'
        if base.startswith('v_cmp'):
            i.dst=R[0]; i.src=sum(R[1:],[])
            if base.startswith('v_cmpx'): i.dst = i.dst + [('s','exec_lo'),('s','exec_hi')]
        elif base.startswith('v_permlane') and 'swap' in base:
            i.dst=R[0]+R[1]; i.src=R[0]+R[1]
        elif base in ('v_add_co_u32','v_sub_co_u32','v_subrev_co_u32','v_addc_co_u32','v_subb_co_u32'):
            i.dst=R[0]+R[1]; i.src=sum(R[2:],[])
        elif base=='v_nop': pass
        else:
            i.dst=R[0]; i.src=sum(R[1:],[])
            if base.startswith(('v_fmac','v_mac','v_dot2c','v_pk_fmac','v_writelane','v_dot4c')) or 'UNUSED_PRESERVE' in rest or (base=='v_cndmask_b32' and False):
                i.src = i.src + R[0]
            if base=='v_cndmask_b32' and len(ops)==3: i.src += regs_of('vcc')
            if i.isdpp: i.src = i.src + R[0]
    elif op.startswith('ds_'):
        i.cls='ds'
        if op.startswith(('ds_read','ds_bpermute','ds_permute','ds_swizzle')) or '_rtn' in op:
            i.dst=R[0]; i.src=sum(R[1:],[])
            if 'd16' in op: i.src = i.src + R[0]
        else:
            i.src=sum(R,[]); i.data=sum(R[1:],[]) if 'addtid' not in op else sum(R,[])
        if 'addtid' in op: i.src = i.src + [('s','m0')]
    elif op.startswith(('global_','buffer_','flat_')):
        i.cls='vmem'
        isload = '_load' in op
        isatomic = '_atomic' in op
        if i.lds:
            i.src=sum(R,[])+[('s','m0')]
        elif isload:
            i.dst=R[0]; i.src=sum(R[1:],[])
            if 'd16' in op: i.src = i.src + R[0]
        elif isatomic and re.search(r'\bsc0\b', rest):
            i.dst=R[0]; i.src=sum(R[1:],[])
        else:
            i.src=sum(R,[])
            if op.startswith('global_'): i.data=R[1]
            else: i.data=R[0]
    elif op.startswith('s_load') :
        i.cls='smem'; i.dst=R[0]; i.src=sum(R[1:],[])
    elif op=='s_nop':
        i.cls='nop'; i.states=int(ops[0],0)+1
    elif op=='s_waitcnt':
        i.cls='wait'
    elif op.startswith(('s_branch','s_cbranch')):
        i.cls='branch'; i.target=ops[0]
        if 'vcc' in op: i.src=regs_of('vcc')
        if 'exec' in op: i.src=regs_of('exec')
    elif op in ('s_barrier','s_endpgm','s_sleep','s_setprio','s_sethalt'):
        i.cls='misc'
    elif op.startswith('s_'):
        i.cls='salu'
        if op.startswith(('s_cmp','s_bitcmp')): i.src=sum(R,[])
        else:
            i.dst=R[0] if R else []; i.src=sum(R[1:],[])
            if 'saveexec' in op: i.dst = i.dst + regs_of('exec'); i.src += regs_of('exec')
            if op.startswith(('s_addk','s_mulk')): i.src += R[0]
    else:
        raise ValueError('unknown instr: '+line)
    return i
def isS(r): return r[0]=='s'
def need(p, c):
    n = 0
    pd=set(p.dst); cs=set(c.src); cd=set(c.dst)
    if p.cls=='valu':
        vd={r for r in pd if not isS(r)}; sd={r for r in pd if isS(r)}
        if c.cls=='mfma' and vd & cs: n=max(n,2)
        if c.cls=='mfma' and ('s','exec_lo') in sd: n=max(n,4)
        if c.cls=='vmem' and sd & cs: n=max(n,5)
        if c.cls=='valu':
            cb = c.op
            if sd & cs:
                if cb.startswith(('v_readlane','v_writelane')): n=max(n,4)
                else: n=max(n,2)
            if cb.startswith('v_cndmask') and sd & cs: n=max(n,2)
            if c.isdpp and vd & cs: n=max(n,2)
            if c.isdpp and ('s','exec_lo') in sd: n=max(n,5)
            if cb.startswith(('v_readlane','v_readfirstlane')) and vd & cs: n=max(n,1)
            if cb.startswith(('v_readlane','v_readfirstlane','v_writelane','v_permlane')) and ('s','exec_lo') in sd: n=max(n,4)
            if cb.startswith('v_permlane') and vd & cs: n=max(n,2)
            if (p.issdwa or 'op_sel' in p.mods and not p.op.startswith('v_pk_')) and vd & (cs|cd): n=max(n,1)
            if p.op.startswith(TRANS) and not cb.startswith(TRANS) and vd & cs: n=max(n,1)
            if p.op.startswith('v_dot'):
                pb=re.sub(r'_(e32|e64)$','',p.op); cb2=re.sub(r'_(e32|e64)$','',cb)
                if vd & (cs|cd):
                    if pb==cb2:
                        ab=set()
                        for t in c.ops[1:3]: ab|=set(regs_of(t))
                        if vd & ab: n=max(n,3)
                    else: n=max(n,3)
        if p.op.startswith('v_dot') and c.cls in ('ds','vmem','mfma') and vd & cs: n=max(n,3)
        if p.op.startswith(TRANS) and c.cls in('mfma',) and vd&cs: n=max(n,2)
        if c.cls=='branch' and sd & cs: n=max(n,1)
        if c.cls=='salu' and sd & cs: n=max(n,1)
    if p.cls=='mfma':
        P=p.passes
        tC={2:4,4:6,8:10,16:18}[P]; tR={2:5,4:8,8:12,16:20}[P]; tW={2:1,4:3,8:7,16:15}[P]
        if c.cls=='mfma':
            cC=set(c.srcC)
            if pd & cC:
                if p.dst==c.srcC and p.passes==c.passes: n=max(n,2 if P==2 else 0)
                else: n=max(n,tC)
            if pd & set(c.srcAB): n=max(n,tR)
            if pd & cd and not (pd & cC): n=max(n,tR)
        elif c.cls in('valu','ds','vmem'):
            if pd & (cs|cd): n=max(n,tR)
            if c.cls=='valu' and set(p.srcC) & cd: n=max(n,tW)
    if p.cls=='vmem' and p.data and len(p.data)>=3:
        if set(p.data) & cd: n=max(n, 2 if c.cls=='valu' else 1)
    if p.cls=='salu' and ('s','m0') in pd:
        if (c.cls=='vmem' and c.lds) or (c.cls=='ds' and 'addtid' in c.op): n=max(n,1)
    return n
WIN=24
def fix(lines):
    ins=[parse(l) for l in lines]
    out=[]
    def req(hist, c):
        d=0; r=0
        for p in reversed(hist):
            if d>WIN: break
            if p.states and p.cls not in('nop','none','label','wait','misc','branch'):
                r=max(r, need(p,c)-d)
            d+=p.states
        return r
    def nops(n):
        L=[]
        while n>0:
            k=min(n,8); L.append(parse(f'  s_nop {k-1}')); n-=k
        return L
    nins=0
    for c in ins:
        if c.cls not in('none','label','nop'):
            r=req(out,c)
            if r>0: out+=nops(r); nins+=r
        out.append(c)
    changed=True; it=0
    while changed and it<5:
        changed=False; it+=1
        pos={i.label:k for k,i in enumerate(out) if i.cls=='label'}
        for b,bi in enumerate(out):
            if bi.cls=='branch' and bi.target in pos:
                t=pos[bi.target]
                hist=out[max(0,b-40):b+1]
                h=list(hist); d=0; worst=0
                for c in out[t:t+40]:
                    if d>WIN: break
                    if c.cls not in('none','label','nop'):
                        dd=0; r=0
                        for k,p in enumerate(reversed(h)):
                            if dd>WIN: break
                            if len(h)-1-k < len(hist) and p.states and p.cls not in('nop','none','label','wait','misc','branch'):
                                r=max(r,need(p,c)-dd)
                            dd+=p.states
                        worst=max(worst,r)
                    h.append(c); d+=c.states
                if worst>0:
                    out[b:b]=nops(worst); nins+=worst; changed=True; break
    return [i.text for i in out], nins
def check_waits(lines, verbose=True):
    ins=[parse(l) for l in lines]
    pos={i.label:k for k,i in enumerate(ins) if i.cls=='label'}
    vm=[]; lg=[]; errs=[]
    k=0; taken=set(); steps=0
    while k<len(ins):
        steps+=1
        c=ins[k]
        if c.cls=='wait':
            m=re.search(r'vmcnt\((\d+)\)',c.text)
            if m:
                n=int(m.group(1));
                while len(vm)>n: vm.pop(0)
            m=re.search(r'lgkmcnt\((\d+)\)',c.text)
            if m:
                n=int(m.group(1))
                if any(x[1]=='smem' for x in lg) and n>0:
                    pass
                else:
                    while len(lg)>n: lg.pop(0)
                if n==0: lg.clear()
        elif c.cls not in('none','label','nop'):
            use=set(c.src)|set(c.dst)
            for q,nm in((vm,'vm'),(lg,'lgkm')):
                for (regs,kind,txt) in q:
                    bad = regs & use
                    if bad:
                        if c.cls in('ds','vmem') and 'd16' in c.op and 'd16' in txt and not (regs & (set(c.src)-set(c.dst))): continue
                        errs.append(f'line {k}: {c.text.strip()}  uses pending {nm} {sorted(bad)[:4]} from: {txt.strip()}')
            if c.cls=='vmem':
                vm.append((set(c.dst),'vm',c.text))
                if len(vm)>63: errs.append(f'line {k}: vmcnt overflow {len(vm)}')
            elif c.cls=='ds': lg.append((set(c.dst),'ds',c.text))
            elif c.cls=='smem': lg.append((set(c.dst),'smem',c.text))
            if c.cls=='branch' and c.target in pos:
                t=pos[c.target]
                if t<=k and k not in taken:
                    taken.add(k); k=t; continue
                if c.op=='s_branch' and t>k:
                    k=t; continue
        k+=1
    seen=set(); res=[]
    for e in errs:
        if e not in seen: seen.add(e); res.append(e)
    return res
```

```python
import sys, os, argparse
sys.path.insert(0, os.path.dirname(__file__))
import hz
NAME = "interleave_layers__ssm_conv_s4d__glu_gated_glu__prompt_kernel"
NWG = 224
WS_WP = 0x0
WS_X = [0x0800000, 0x0A00000, 0x0C00000]
WS_H = [0x1000000, 0x1800000]
WS_Z = 0x2000000
WS_ST3 = WS_Z
WS_CB = WS_Z + 0x4000
WS_ST1 = 0x2100000
WS_DBG = 0x3000000
XT_BYTES = 28672
L_KP = 0; KPC = 8320; KPO = 4160
L_MISC = 16640
L_XT = 32768
LDS_TOTAL = 163840
sW, sX, sQ, sGRP, sJ = 3, 4, 5, 6, 7
pAU, pLOGA, pAIM, pCRE, pCIM, pLDT, pDSK = 16, 18, 20, 22, 24, 26, 28
pWG, pWU, pWD, pOUT, pDBG, pWS = 32, 34, 36, 38, 40, 42
sLDT, sDSK = 44, 45
sLAYER = 46
sONES = 47
sXIN, sXMID, sXOUT, sHOFF, sSTOFF = 48, 49, 50, 51, 52
sT = 56
sSTAMP = 64
def sp(n): return f"s[{n}:{n+1}]"
def vr(n, k=1): return f"v{n}" if k == 1 else f"v[{n}:{n+k-1}]"
def ar(n, k=1): return f"a{n}" if k == 1 else f"a[{n}:{n+k-1}]"
class G:
    def __init__(self, opt):
        self.L = []; self.opt = opt; self.nlab = 0; self.nstamp = 0
    def __call__(self, s):
        for l in s.split('\n'):
            l = l.strip()
            if l: self.L.append('  ' + l if not l.endswith(':') else l)
    def lab(self, p='L'):
        self.nlab += 1; return f"{p}_{self.nlab}"
    def stamp(self):
        if not self.opt.stamps: return
        k = self.nstamp; self.nstamp += 1
        assert k < 30
        self(f"s_memtime s[98:99]\ns_waitcnt lgkmcnt(0)\ns_mov_b32 s{sSTAMP+k}, s98")
    def fin_stamps(self):
        if not self.opt.stamps: return
        e = self
        skip = e.lab('nost')
        e(f"s_cmp_lg_u32 s{sW}, 0\ns_cbranch_scc1 {skip}")
        e(f"s_lshl_b32 s{sT}, s2, 7\ns_add_u32 s{sT}, s{sT}, {WS_DBG + 0x800000}\nv_mov_b32 v4, s{sT}")
        for k in range(self.nstamp):
            e(f"v_mov_b32 v5, s{sSTAMP+k}\nglobal_store_dword v4, v5, {sp(pWS)} offset:{4*k}")
        e(f"{skip}:")
    def dump_lds(self, base, nbytes, dst=0):
        e = self
        e("s_waitcnt vmcnt(0) lgkmcnt(0)\ns_barrier")
        e(f"v_lshlrev_b32 v4, 4, v0\ns_mul_i32 s{sT}, s2, {nbytes}\ns_add_u32 s{sT}, s{sT}, {WS_DBG+dst}\nv_add_u32 v5, s{sT}, v4\nv_add_u32 v4, {base}, v4")
        for k in range(nbytes // 4096):
            e(f"ds_read_b128 v[8:11], v4 offset:{(k*4096) % 65536}\ns_waitcnt lgkmcnt(0)\nglobal_store_dwordx4 v5, v[8:11], {sp(pWS)}\nv_add_u32 v5, 4096, v5\ns_nop 1")
            if (k + 1) * 4096 % 65536 == 0: e("v_add_u32 v4, 65536, v4")
    def end(self):
        self.fin_stamps()
        self("s_waitcnt vmcnt(0)\ns_endpgm")

def poll(e, vaddr, target, nl_mask, base=pWS, vtmp=6):
    lp = e.lab('poll'); dn = e.lab('pdone')
    e(f"s_mov_b32 s{sT}, 20000")
    e(f"{lp}:")
    e(f"global_load_dword v{vtmp}, v{vaddr}, {sp(base)} sc1\ns_waitcnt vmcnt(0)")
    e(f"v_cmp_ne_u32 vcc, {target}, v{vtmp}" if isinstance(target, int) and target <= 64 else f"v_cmp_ne_u32 vcc, s{sT+1}, v{vtmp}")
    e(f"s_cbranch_vccz {dn}")
    e(f"s_sub_u32 s{sT}, s{sT}, 1\ns_cmp_lg_u32 s{sT}, 0\ns_cbranch_scc1 {lp}")
    e(f"{dn}:")

def gbar(e, blk):
    skip = e.lab('gb')
    e("s_waitcnt vmcnt(0)\ns_barrier")
    e(f"s_cmp_lg_u32 s{sW}, 0\ns_cbranch_scc1 {skip}")
    e("s_mov_b64 exec, 0xff")
    base = WS_CB + blk * 0x2000
    e(f"v_lshlrev_b32 v4, 10, v1\ns_lshl_b32 s{sT}, s{sX}, 7\ns_add_u32 s{sT}, s{sT}, {base}\nv_add_u32 v4, s{sT}, v4\nv_mov_b32 v5, 1")
    e(f"global_atomic_add v4, v5, {sp(pWS)} sc1")
    e(f"v_lshlrev_b32 v4, 7, v1\ns_lshl_b32 s{sT}, s{sX}, 10\ns_add_u32 s{sT}, s{sT}, {base}\nv_add_u32 v4, s{sT}, v4")
    e("s_waitcnt vmcnt(0)")
    poll(e, 4, 28, 0xff)
    e("s_mov_b64 exec, -1")
    e(f"{skip}:\ns_barrier")

def grpbar(e, soff_line):
    skip = e.lab('gp')
    e("s_waitcnt vmcnt(0)\ns_barrier")
    e(f"s_cmp_lg_u32 s{sW}, 0\ns_cbranch_scc1 {skip}")
    e("s_mov_b64 exec, 1")
    e(f"v_mov_b32 v4, s{soff_line}\nv_mov_b32 v5, 1")
    e(f"global_atomic_add v4, v5, {sp(pWS)} sc1\ns_waitcnt vmcnt(0)")
    poll(e, 4, 14, 1)
    e("s_mov_b64 exec, -1")
    e(f"{skip}:\ns_barrier")

LOG2E = 0x3FB8AA3B
INV2PI = 0x3E22F983
def f2u(x):
    import struct; return struct.unpack('<I', struct.pack('<f', x))[0]

def cmul(e, d, a, b, t):
    e(f"v_pk_mul_f32 {vr(t,2)}, {vr(a,2)}, {vr(b,2)} op_sel:[0,0] op_sel_hi:[0,1]")
    e(f"v_pk_fma_f32 {vr(d,2)}, {vr(a,2)}, {vr(b,2)}, {vr(t,2)} op_sel:[1,1,0] op_sel_hi:[1,0,1] neg_lo:[1,0,0]")

def rbf16(e, v, t=None):
    e(f"v_cvt_pk_bf16_f32 v{v}, v{v}, v{v}\nv_lshlrev_b32 v{v}, 16, v{v}")

L_PK = 0
L_PS = 28672
L_BS = [L_XT, L_XT + 55120]
ROWB = 1040
L_AS_OFF = 32 * ROWB
L_KX = L_MISC
TB0 = 0x3E80
L_TBL_ADD = [1024, 1024 + 4096]
vXG = 20

def p0(e):
    o = e.opt
    e(f"s_cmp_ge_u32 s2, {NWG}\ns_cbranch_scc1 L_exit")
    e("s_load_dwordx16 s[16:31], s[0:1], 0\ns_load_dwordx8 s[32:39], s[0:1], 64\ns_load_dwordx4 s[40:43], s[0:1], 96")
    e(f"v_lshrrev_b32 v3, 6, v0\nv_and_b32 v1, 63, v0\nv_readfirstlane_b32 s{sW}, v3\nv_lshlrev_b32 v2, 4, v1")
    e(f"s_and_b32 s{sX}, s2, 7\ns_lshr_b32 s{sQ}, s2, 3\ns_cmp_ge_u32 s{sQ}, 14\ns_cselect_b32 s{sT}, 14, 0\ns_cselect_b32 s{sT+1}, 8, 0")
    e(f"s_sub_u32 s{sJ}, s{sQ}, s{sT}\ns_add_u32 s{sGRP}, s{sX}, s{sT+1}")
    e(f"s_mov_b32 s{sONES}, 0x3f803f80")
    e("s_waitcnt lgkmcnt(0)")
    e.stamp()
    e(f"s_lshl_b32 s{sT}, s2, 2\ns_load_dword s{sLDT}, {sp(pLDT)}, s{sT}\ns_load_dword s{sDSK}, {sp(pDSK)}, s{sT}")
    e(f"v_lshlrev_b32 v4, 1, v0\ns_lshl_b32 s{sT}, s2, 10\nv_add_u32 v4, s{sT}, v4")
    for c in range(2):
        for k, p in enumerate([pLOGA, pAIM, pCRE, pCIM]):
            e(f"global_load_ushort v{10+4*c+k}, v4, {sp(p)} offset:{512*c}")
    nopack = e.lab('nopack'); packld = e.lab('packld')
    sSRC = 60
    sSTR, sFLAG = 62, 63
    e(f"s_cmp_ge_u32 s2, 168\ns_cbranch_scc1 {nopack}")
    iswd = e.lab('iswd'); cfg = e.lab('cfg')
    e(f"s_cmp_ge_u32 s2, 112\ns_cbranch_scc1 {iswd}")
    e(f"s_bitcmp1_b32 s2, 0\ns_cselect_b32 s{sSRC}, s{pWU}, s{pWG}\ns_cselect_b32 s{sSRC+1}, s{pWU+1}, s{pWG+1}")
    e(f"s_lshr_b32 s{sT}, s2, 1\ns_lshl_b32 s{sT}, s{sT}, 6\ns_mov_b32 s{sSTR}, 3584\ns_mov_b32 s{sFLAG}, {hex(f2u(1.0/448))}\ns_mov_b32 s{sT+1}, 0\ns_mov_b32 s{sT+2}, 256\ns_mov_b32 s{sT+3}, 9")
    e(f"s_branch {cfg}")
    e(f"{iswd}:")
    e(f"s_mov_b32 s{sSRC}, s{pWD}\ns_mov_b32 s{sSRC+1}, s{pWD+1}")
    e(f"s_sub_u32 s{sT+1}, s2, 112\ns_lshr_b32 s{sT}, s{sT+1}, 2\ns_lshl_b32 s{sT}, s{sT}, 6\ns_and_b32 s{sT+1}, s{sT+1}, 3\ns_mul_i32 s{sT+1}, s{sT+1}, 448")
    e(f"s_mov_b32 s{sSTR}, 896\ns_mov_b32 s{sFLAG}, 0\ns_mov_b32 s{sT+2}, 512\ns_mov_b32 s{sT+3}, 8")
    e(f"{cfg}:")
    e(f"s_mul_i32 s8, s{sW}, 112\ns_add_u32 s8, s8, s{sT+1}")
    e(f"v_lshrrev_b32 v5, 2, v1\nv_add_u32 v5, s8, v5\nv_mul_lo_u32 v5, v5, s{sSTR}\nv_and_b32 v6, 3, v1\nv_lshlrev_b32 v6, 4, v6\nv_add3_u32 v5, v5, v6, s{sT}")
    e(f"s_lshl_b32 s9, s{sSTR}, 4\ns_mul_i32 s10, s{sW}, 7168\ns_add_u32 s10, s10, {L_PK}")
    for i in range(7):
        e(f"s_add_u32 m0, s10, {1024*i}")
        e(f"global_load_lds_dwordx4 v5, {sp(sSRC)}")
        if i < 6: e(f"v_add_u32 v5, s9, v5")
    e(f"v_lshrrev_b32 v6, 5, v1\nv_lshlrev_b32 v6, s{sT+3}, v6           ; (grp>>1)*rows*64")
    e(f"v_and_b32 v7, 15, v1\nv_lshrrev_b32 v7, 2, v7\nv_lshlrev_b32 v7, 6, v7\nv_add_u32 v6, v6, v7")
    e(f"v_bfe_u32 v7, v1, 4, 1\nv_lshlrev_b32 v7, 5, v7\nv_add_u32 v6, v6, v7\nv_and_b32 v7, 3, v1\nv_lshlrev_b32 v7, 3, v7")
    e(f"v_add3_u32 v7, v6, v7, s10\nv_add_u32 v8, s{sT+2}, v7")
    e(f"s_branch {packld}")
    e(f"{nopack}:")
    e(f"s_sub_u32 s{sT}, s2, 168\ns_lshl_b32 s{sT}, s{sT}, 12\ns_add_u32 s{sT}, s{sT}, {WS_Z}\nv_lshlrev_b32 v5, 4, v0\nv_add_u32 v5, s{sT}, v5")
    e("v_mov_b32 v84, 0\nv_mov_b32 v85, 0\nv_mov_b32 v86, 0\nv_mov_b32 v87, 0")
    e(f"global_store_dwordx4 v5, v[84:87], {sp(pWS)} sc1")
    e(f"{packld}:")
    nost = e.lab('nostat')
    e(f"s_lshl_b32 s11, s2, 3\ns_cmp_eq_u32 s{sW}, 0\ns_cbranch_scc1 {nost}_a")
    e(f"s_cmp_lg_u32 s{sW}, 1\ns_cbranch_scc1 {nost}\ns_cmp_ge_u32 s2, 32\ns_cbranch_scc1 {nost}\ns_add_u32 s11, s11, 1792")
    e(f"{nost}_a:")
    e(f"v_lshrrev_b32 v9, 3, v1\nv_add_u32 v9, s11, v9\nv_mul_u32_u24 v88, 896, v9\nv_and_b32 v89, 7, v1\nv_lshlrev_b32 v89, 4, v89\nv_add_u32 v88, v88, v89")
    for c in range(7):
        e(f"global_load_dwordx4 {vr(28+4*c,4)}, v88, {sp(pAU)} offset:{128*c}")
    e("s_waitcnt vmcnt(0)")
    e("v_mov_b32 v90, 0\nv_mov_b32 v91, 0")
    for k in range(28):
        e(f"v_dot2_f32_bf16 v90, v{28+k}, s{sONES}, v90")
    for k in range(28):
        e(f"v_dot2_f32_bf16 v91, v{28+k}, v{28+k}, v91")
    for dpp in ["quad_perm:[1,0,3,2]", "quad_perm:[2,3,0,1]", "row_half_mirror"]:
        e(f"v_add_f32_dpp v90, v90, v90 {dpp} row_mask:0xf bank_mask:0xf\nv_add_f32_dpp v91, v91, v91 {dpp} row_mask:0xf bank_mask:0xf")
    e(f"v_lshlrev_b32 v9, 3, v9\nv_add_u32 v9, {WS_ST1}, v9")
    e("s_mov_b32 exec_lo, 0x01010101\ns_mov_b32 exec_hi, 0x01010101")
    e(f"global_store_dwordx2 v9, v[90:91], {sp(pWS)} sc1")
    e("s_mov_b64 exec, -1")
    e(f"{nost}:")
    e(f"v_mul_u32_u24 v4, 7168, v0\ns_lshl_b32 s{sT+4}, s2, 2\nv_add_u32 v4, s{sT+4}, v4\nv_add_u32 v9, 3584, v4")
    for k in range(8):
        e(f"global_load_dword v{vXG+k}, v{4 if k<4 else 9}, {sp(pAU)} offset:{896*(k%4)}")
    nop2 = e.lab('nopack2')
    e(f"s_cmp_ge_u32 s2, 168\ns_cbranch_scc1 {nop2}")
    e("s_waitcnt vmcnt(8)")
    for i in range(7):
        e(f"ds_read_b64_tr_b16 {vr(56+4*i,2)}, v7 offset:{1024*i}\nds_read_b64_tr_b16 {vr(58+4*i,2)}, v8 offset:{1024*i}")
    e("v_mov_b32 v90, 0\ns_waitcnt lgkmcnt(0)")
    for k in range(28):
        e(f"v_dot2_f32_bf16 v90, v{56+k}, s{sONES}, v90")
    e("s_nop 2\nv_mov_b32 v91, v90\ns_nop 1\nv_permlane32_swap_b32 v90, v91\ns_nop 1\nv_add_f32 v90, v90, v91")
    e(f"v_and_b32 v92, 31, v1\nv_lshlrev_b32 v92, 2, v92\ns_lshl_b32 s8, s{sW}, 7\nv_add_u32 v93, s8, v92")
    e(f"ds_write_b32 v93, v90 offset:{L_PS}\ns_waitcnt lgkmcnt(0)\ns_barrier")
    for w in range(4):
        e(f"ds_read_b32 v{94+w}, v92 offset:{L_PS+128*w}")
    e("s_waitcnt lgkmcnt(0)")
    e(f"v_add_f32 v94, v94, v95\nv_add_f32 v96, v96, v97\nv_add_f32 v94, v94, v96\nv_mul_f32 v94, s{sFLAG}, v94")
    e(f"s_mul_i32 s8, s2, 28672\ns_mul_i32 s9, s{sW}, 7168\ns_add_u32 s8, s8, s9\ns_add_u32 s8, s8, {WS_WP}\nv_add_u32 v5, s8, v2")
    for i in range(7):
        for r in range(4):
            v = 56 + 4*i + r
            e(f"v_lshlrev_b32 v95, 16, v{v}\nv_and_b32 v96, 0xffff0000, v{v}\nv_sub_f32 v95, v95, v94\nv_sub_f32 v96, v96, v94\nv_cvt_pk_bf16_f32 v{v}, v95, v96")
        e(f"global_store_dwordx4 v5, {vr(56+4*i,4)}, {sp(pWS)} offset:{(i%4)*1024} sc1")
        if i == 3: e("v_add_u32 v5, 4096, v5")
    e(f"{nop2}:")
    e("s_waitcnt vmcnt(0)\ns_barrier")
    sk = e.lab('s1sig')
    e(f"s_cmp_lg_u32 s{sW}, 0\ns_cbranch_scc1 {sk}")
    e(f"s_mov_b64 exec, 1\ns_and_b32 s8, s2, 1\ns_lshl_b32 s8, s8, 7\nv_mov_b32 v4, s8\nv_mov_b32 v5, 1")
    e(f"global_atomic_add v4, v5, {sp(pDBG)} sc1\ns_mov_b64 exec, -1")
    e(f"{sk}:")
    e.stamp()
    e("s_waitcnt lgkmcnt(0)")
    for c in range(2):
        lar, aim, cr, ci = 10+4*c, 11+4*c, 12+4*c, 13+4*c
        dt = 30
        if c == 0: e(f"s_lshl_b32 s8, s{sLDT}, 16")
        else: e(f"s_and_b32 s8, s{sLDT}, 0xffff0000")
        e(f"v_mov_b32 v{dt}, s8\nv_mul_f32 v{dt}, {hex(LOG2E)}, v{dt}\nv_exp_f32 v{dt}, v{dt}")
        e("s_nop 0"); rbf16(e, dt)
        for r in (lar, aim, cr, ci): e(f"v_lshlrev_b32 v{r}, 16, v{r}")
        e(f"v_mul_f32 v{lar}, {hex(LOG2E)}, v{lar}\nv_exp_f32 v{lar}, v{lar}")
        e("s_nop 0"); rbf16(e, lar)
        e(f"v_mul_f32 v{lar}, v{lar}, v{dt}\nv_mul_f32 v{aim}, v{aim}, v{dt}\nv_mul_f32 v{cr}, v{cr}, v{dt}\nv_mul_f32 v{ci}, v{ci}, v{dt}")
        e(f"v_mul_f32 v{lar}, {hex(f2u(-1.4426950408889634))}, v{lar}\nv_mul_f32 v{aim}, {hex(INV2PI)}, v{aim}")
        E1, E8, E256, E512, E1024 = 32, 34, 36, 38, 40
        for (reg, p) in ((E1, 1), (E8, 8), (E256, 256), (E512, 512), (E1024, 1024)):
            if p == 1:
                e(f"v_exp_f32 v42, v{lar}\nv_fract_f32 v43, v{aim}")
            else:
                e(f"v_mul_f32 v42, {hex(f2u(float(p)))}, v{lar}\nv_mul_f32 v43, {hex(f2u(float(p)))}, v{aim}\nv_exp_f32 v42, v42\nv_fract_f32 v43, v43")
            e(f"v_cos_f32 v{reg}, v43\nv_sin_f32 v{reg+1}, v43\ns_nop 0\nv_mul_f32 v{reg}, v{reg}, v42\nv_mul_f32 v{reg+1}, v{reg+1}, v42")
        e(f"s_lshl_b32 s8, s{sW}, 8\ns_add_u32 m0, s8, {L_BS[c]}")
        Bc, Bn, T = 44, 46, 48
        e(f"v_add_f32 v{Bc}, v{cr}, v{cr}\nv_add_f32 v{Bc+1}, v{ci}, v{ci}")
        for i in range(32):
            e(f"v_cvt_pk_bf16_f32 v50, v{Bc}, -v{Bc+1}\nds_write_addtid_b32 v50 offset:{i*ROWB}")
            if i < 31:
                cmul(e, Bn, Bc, E8, T); Bc, Bn = Bn, Bc
        def arow(j, reg):
            e(f"v_cvt_pk_bf16_f32 v50, v{reg}, v{reg+1}\nds_write_addtid_b32 v50 offset:{L_AS_OFF + j*ROWB}")
        e("v_mov_b32 v50, 0x3f80"); e(f"ds_write_addtid_b32 v50 offset:{L_AS_OFF}")
        e2, e3, e4, e5, e6, e7, X = 52, 54, 56, 58, 60, 62, 64
        arow(1, E1)
        cmul(e, e2, E1, E1, T); arow(2, e2)
        cmul(e, e3, e2, E1, T); arow(3, e3)
        cmul(e, e4, e2, e2, T); arow(4, e4)
        cmul(e, e5, e4, E1, T); arow(5, e5)
        cmul(e, e6, e4, e2, T); arow(6, e6)
        cmul(e, e7, e4, e3, T); arow(7, e7)
        arow(8, E256)
        cmul(e, X, E256, e2, T); arow(9, X)
        cmul(e, X, E256, e4, T); arow(10, X)
        cmul(e, X, E256, e6, T); arow(11, X)
        arow(12, E512)
        cmul(e, X, E512, e4, T); arow(13, X)
        E768 = 66
        cmul(e, E768, E512, E256, T); arow(14, E768)
        cmul(e, X, E768, e4, T); arow(15, X)
        arow(16, E1024)
        cmul(e, X, E1024, E256, T); arow(17, X)
        cmul(e, X, E1024, E512, T); arow(18, X)
        cmul(e, X, E1024, E768, T); arow(19, X)
        cmul(e, X, E1024, E1024, T); arow(20, X)
    e("s_waitcnt lgkmcnt(0)\ns_barrier")
    e.stamp()
    e(f"s_lshr_b32 s8, s{sW}, 1\ns_mul_i32 s8, s8, 55120\ns_and_b32 s9, s{sW}, 1\ns_lshl_b32 s10, s9, 9\ns_add_u32 s8, s8, s10\ns_add_u32 s8, s8, {L_XT}")
    e(f"v_and_b32 v4, 31, v1\nv_mul_u32_u24 v4, {ROWB}, v4\nv_lshrrev_b32 v5, 5, v1\nv_lshlrev_b32 v5, 4, v5\nv_add3_u32 v4, v4, v5, s8")
    for ks in range(16):
        e(f"ds_read_b128 {vr(96+8*ks,4)}, v4 offset:{32*ks}\nds_read_b128 {vr(100+8*ks,4)}, v4 offset:{L_AS_OFF+32*ks}")
    for ks in range(16):
        e(f"s_waitcnt lgkmcnt({min(15, 2*(15-ks))})") if 2*(15-ks) <= 15 else (e("s_waitcnt lgkmcnt(15)") if ks == 0 else None)
        e(f"v_mfma_f32_32x32x16_bf16 v[64:79], {vr(96+8*ks,4)}, {vr(100+8*ks,4)}, {'0' if ks==0 else 'v[64:79]'}")
    snd = e.lab('snd1'); snd2 = e.lab('snd2')
    e(f"s_xor_b32 s8, s{sW}, 1\ns_lshl_b32 s8, s8, 11\nv_add_u32 v4, s8, v2\ns_lshl_b32 s8, s{sW}, 11\nv_add_u32 v5, s8, v2")
    e(f"s_cmp_eq_u32 s9, 0\ns_cbranch_scc0 {snd}")
    e(f"ds_write_b128 v4, v[72:75] offset:{L_KX}\nds_write_b128 v4, v[76:79] offset:{L_KX+1024}")
    e(f"s_branch {snd2}")
    e(f"{snd}:")
    e(f"ds_write_b128 v4, v[64:67] offset:{L_KX}\nds_write_b128 v4, v[68:71] offset:{L_KX+1024}")
    for r in range(8): e(f"v_mov_b32 v{64+r}, v{72+r}")
    e(f"{snd2}:")
    e("s_waitcnt lgkmcnt(0)\ns_barrier")
    e(f"ds_read_b128 v[72:75], v5 offset:{L_KX}\nds_read_b128 v[76:79], v5 offset:{L_KX+1024}")
    e("v_and_b32 v82, 31, v1")
    e("v_mov_b32 v80, v82")
    e("v_lshlrev_b32 v83, 1, v82\nv_add_u32 v83, 240, v83\nv_cmp_le_u32 vcc, 8, v82\nv_cndmask_b32 v80, v80, v83, vcc")
    e("v_and_b32 v83, 1, v82\nv_lshlrev_b32 v83, 2, v83\nv_bfe_u32 v84, v82, 1, 1\nv_lshlrev_b32 v84, 8, v84\nv_add3_u32 v83, v83, v84, 0\nv_add_u32 v83, 512, v83")
    e("v_cmp_le_u32 vcc, 12, v82\nv_cndmask_b32 v80, v80, v83, vcc")
    e("v_lshlrev_b32 v83, 8, v82\nv_subrev_u32 v83, 3072, v83\nv_cmp_le_u32 vcc, 16, v82\nv_cndmask_b32 v80, v80, v83, vcc")
    e("v_cvt_f32_u32 v80, v80")
    e(f"v_mov_b32 v81, {hex(f2u(8.0))}\nv_mov_b32 v83, {hex(f2u(16.0))}\nv_cmp_le_u32 vcc, 20, v82\nv_cndmask_b32 v81, v81, v83, vcc")
    e("v_lshrrev_b32 v83, 5, v1\nv_lshlrev_b32 v83, 2, v83\ns_lshl_b32 s10, s9, 4\nv_add_u32 v83, s10, v83\nv_cvt_f32_u32 v83, v83")
    e("v_fma_f32 v84, v81, v83, v80")
    e("v_add_f32 v85, v84, v81\nv_add_f32 v86, v85, v81\nv_add_f32 v87, v86, v81")
    e(f"s_mov_b32 s10, {hex(f2u(8.0))}")
    for k in range(4): e(f"v_fma_f32 v{88+k}, v81, s10, v{84+k}")
    e(f"s_mov_b32 s10, {hex(f2u(2064.0))}")
    for k in range(8): e(f"v_med3_f32 v{84+k}, v{84+k}, 0.5, s10")
    for k in range(4): e(f"v_cvt_pk_bf16_f32 v{84+2*k}, v{84+2*k}, v{85+2*k}")
    for k in range(4): e(f"v_lshrrev_b32 v{85+2*k}, 15, v{84+2*k}\nv_lshlrev_b16 v{84+2*k}, 1, v{84+2*k}")
    e(f"s_lshr_b32 s8, s{sW}, 1\ns_lshl_b32 s8, s8, 12\ns_add_u32 s8, s8, {L_TBL_ADD[0]}")
    for k in range(8): e(f"v_add_u32 v{84+k}, s8, v{84+k}")
    e("s_waitcnt lgkmcnt(0)")
    for k in range(8): e(f"v_add_f32 v{64+k}, v{64+k}, v{72+k}")
    for k in range(4): e(f"v_cvt_pk_bf16_f32 v{64+k}, v{64+2*k}, v{65+2*k}")
    for k in range(4):
        e(f"ds_write_b16 v{84+2*k}, v{64+k}\nds_write_b16_d16_hi v{85+2*k}, v{64+k}")
    e(f"v_mov_b32 v92, s8\nv_mov_b32 v93, 0\nds_write_b16 v92, v93 offset:{2*TB0}")
    e("s_waitcnt lgkmcnt(0)\ns_barrier")
    e(f"v_lshrrev_b32 v4, 7, v0\nv_and_b32 v5, 127, v0\nv_lshlrev_b32 v6, 12, v4\nv_add_u32 v6, {L_TBL_ADD[0]}, v6")
    e(f"v_mul_u32_u24 v7, {KPC}, v4\nv_lshlrev_b32 v8, 4, v5\nv_add_u32 v7, v7, v8")
    e("v_lshlrev_b32 v8, 3, v5\nv_sub_u32 v8, 2047, v8\nv_cvt_f32_u32 v8, v8")
    for oc in range(2):
        F = 64
        if oc == 1: e(f"v_subrev_f32 v8, {hex(f2u(1024.0))}, v8")
        e(f"v_mov_b32 v{F}, v8")
        for k in range(1, 10):
            e(f"v_add_f32 v{F+k}, -1.0, v{F+k-1}")
        if oc == 1:
            for k in (7, 8, 9):
                e(f"v_fma_f32 v76, v{F+k}, 0.25, 0.5" if False else f"v_mov_b32 v77, 0x3e800000\nv_fma_f32 v76, v{F+k}, v77, 0.5\nv_max_f32 v{F+k}, v{F+k}, v76")
            e(f"v_max_f32 v{F+9}, 0.5, v{F+9}")
        for k in range(5): e(f"v_cvt_pk_bf16_f32 v{F+2*k}, v{F+2*k}, v{F+2*k+1}")
        for k in range(5): e(f"v_lshrrev_b32 v{F+2*k+1}, 15, v{F+2*k}\nv_lshlrev_b16 v{F+2*k}, 1, v{F+2*k}")
        for k in range(9): e(f"v_add_u32 v{F+k}, v6, v{F+k}")
        V = 80 + 10*oc
        for k in range(9):
            e(f"ds_read_u16 v{V+k}, v{F+k}")
    e("s_waitcnt lgkmcnt(0)")
    for oc in range(2):
        V = 80 + 10*oc
        Ereg = 100 + 8*oc; O = Ereg + 4
        for k in range(4): e(f"v_lshl_or_b32 v{Ereg+k}, v{V+2*k+1}, 16, v{V+2*k}\nv_lshl_or_b32 v{O+k}, v{V+2*k+2}, 16, v{V+2*k+1}")
        e(f"ds_write_b128 v7, {vr(Ereg,4)} offset:{L_KP + 2048*oc}\nds_write_b128 v7, {vr(O,4)} offset:{L_KP + KPO + 2048*oc}")
    e(f"v_and_b32 v4, 1, v0\nv_lshlrev_b32 v4, 4, v4\nv_bfe_u32 v5, v0, 1, 1\nv_mul_u32_u24 v5, {KPO}, v5\nv_bfe_u32 v6, v0, 2, 1\nv_mul_u32_u24 v6, {KPC}, v6\nv_add3_u32 v4, v4, v5, v6")
    e("v_mov_b32 v64, 0\nv_mov_b32 v65, 0\nv_mov_b32 v66, 0\nv_mov_b32 v67, 0")
    e(f"ds_write_b128 v4, v[64:67] offset:{L_KP + 4096}")
    e("s_waitcnt lgkmcnt(0)")
    e.stamp()
    sk = e.lab('s1w')
    e(f"s_cmp_lg_u32 s{sW}, 0\ns_cbranch_scc1 {sk}")
    e("s_mov_b64 exec, 3\nv_lshlrev_b32 v4, 7, v1")
    e(f"s_mov_b32 s{sT+1}, 112")
    poll(e, 4, 112, 3, base=pDBG)
    e("s_mov_b64 exec, -1")
    e(f"{sk}:\ns_barrier")
    e.stamp()

L_U = L_XT + 2*XT_BYTES
UC = 4608
L_Y = L_U + 2*UC
YW = 10240; YT = 1280; YG = 320
L_XR = L_Y
vXR, vUR = 10, 18
vUR = 28
def conv(e):
    o = e.opt
    e("v_lshrrev_b32 v4, 7, v0\nv_and_b32 v5, 127, v0")
    l2 = e.lab('cv_l2'); jn = e.lab('cv_j')
    e(f"v_lshlrev_b32 v6, 6, v5\nv_add_u32 v6, s{sSTOFF}, v6\nv_add_u32 v7, 8192, v6")
    for h in range(2):
        for k in range(4):
            e(f"global_load_dwordx4 {vr(96+16*h+4*k,4)}, v{6+h}, {sp(pWS)} offset:{16*k} sc1")
    e(f"s_cmp_lg_u32 s{sLAYER}, 0\ns_cbranch_scc1 {l2}")
    for k in range(4):
        e(f"v_perm_b32 v{64+k}, v{vXG+2*k+1}, v{vXG+2*k}, s60\nv_perm_b32 v{68+k}, v{vXG+2*k+1}, v{vXG+2*k}, s61".replace('s60', 's60').replace('s61','s61')) if False else None
    e("s_mov_b32 s60, 0x05040100\ns_mov_b32 s61, 0x07060302")
    for k in range(4):
        e(f"v_perm_b32 v{64+k}, v{vXG+2*k+1}, v{vXG+2*k}, s60\nv_perm_b32 v{68+k}, v{vXG+2*k+1}, v{vXG+2*k}, s61")
    e(f"v_lshlrev_b32 v8, 4, v0\nv_add_u32 v8, {L_XR}, v8\nds_write_b128 v8, v[64:67]\nds_write_b128 v8, v[68:71] offset:4096")
    e("s_waitcnt lgkmcnt(0)\ns_barrier")
    e(f"v_lshlrev_b32 v8, 12, v4\nv_lshlrev_b32 v9, 4, v5\nv_add_u32 v8, v8, v9\nv_add_u32 v8, {L_XR}, v8")
    e(f"ds_read_b128 {vr(vXR,4)}, v8\nds_read_b128 {vr(vXR+4,4)}, v8 offset:2048")
    e(f"s_waitcnt lgkmcnt(0)\ns_barrier\ns_branch {jn}")
    e(f"{l2}:")
    e(f"v_lshrrev_b32 v8, 2, v5\nv_mul_u32_u24 v8, {XT_BYTES}, v8\nv_and_b32 v9, 3, v5\nv_lshlrev_b32 v9, 4, v9\nv_lshlrev_b32 v64, 6, v4\nv_add3_u32 v8, v8, v9, v64")
    e(f"s_lshl_b32 s8, s2, 7\ns_add_u32 s8, s8, s{sXIN}\nv_add_u32 v8, s8, v8\nv_add_u32 v9, {32*XT_BYTES}, v8")
    e(f"global_load_dwordx4 {vr(vXR,4)}, v8, {sp(pWS)} sc1\nglobal_load_dwordx4 {vr(vXR+4,4)}, v9, {sp(pWS)} sc1")
    e(f"{jn}:")
    e(f"v_and_b32 v8, 31, v0\nv_min_u32 v8, 29, v8\nv_lshlrev_b32 v8, 4, v8\nv_bfe_u32 v9, v0, 5, 1\nv_mul_u32_u24 v9, {UC}, v9\nv_add_u32 v8, v8, v9\nv_add_u32 v8, {L_U}, v8")
    e("v_mov_b32 v64, 0\nv_mov_b32 v65, 0\nv_mov_b32 v66, 0\nv_mov_b32 v67, 0")
    e(f"ds_write_b128 v8, v[64:67]")
    e("s_waitcnt vmcnt(0)")
    e(f"s_mov_b32 s60, {hex(f2u(1.0/448))}\ns_mov_b32 s61, {hex(f2u(1e-5))}")
    e("v_mov_b32 v70, s61")
    for h in range(2):
        for k in range(8):
            S = 96 + 16*h + 2*k
            x = vXR + 4*h + k//2
            e(f"v_mul_f32 v{S}, s60, v{S}")
            e(f"v_fma_f32 v{S+1}, v{S+1}, s60, v70")
            e(f"v_fma_f32 v{S+1}, -v{S}, v{S}, v{S+1}")
            e(f"v_rsq_f32 v{S+1}, v{S+1}")
            if k % 2 == 0: e(f"v_lshlrev_b32 v{64+k%2}, 16, v{x}")
            else: e(f"v_and_b32 v{64+k%2}, 0xffff0000, v{x}")
            e(f"v_sub_f32 v{64+k%2}, v{64+k%2}, v{S}\nv_mul_f32 v{64+k%2}, v{64+k%2}, v{S+1}")
            if k % 2 == 1: e(f"v_cvt_pk_bf16_f32 v{vUR+4*h+k//2}, v64, v65")
    e(f"v_mul_u32_u24 v8, {UC}, v4\nv_lshlrev_b32 v9, 4, v5\nv_add_u32 v8, v8, v9\nv_add_u32 v8, {L_U}, v8")
    e(f"ds_write_b128 v8, {vr(vUR,4)} offset:480\nds_write_b128 v8, {vr(vUR+4,4)} offset:{480+2048}")
    e("s_waitcnt lgkmcnt(0)\ns_barrier")
    e.stamp()
    if o.stop == 'convu': e.dump_lds(L_U, 12288); e.end(); return True
    ACC = 64; AB = [96, 128]; BB = [160, 192]
    vA = [40, 41, 42, 43]; vB = 44
    e("v_and_b32 v6, 15, v1\nv_lshrrev_b32 v7, 4, v1")
    e(f"s_lshr_b32 s8, s{sW}, 1\ns_and_b32 s9, s{sW}, 1")
    e("v_and_b32 v8, 1, v7\nv_lshlrev_b32 v8, 4, v8\nv_lshrrev_b32 v9, 1, v7\nv_lshlrev_b32 v9, 5, v9\nv_sub_u32 v8, v8, v9")
    e(f"s_mul_i32 s10, s8, {KPC}\ns_lshl_b32 s11, s9, 8\ns_sub_u32 s10, s10, s11\ns_add_u32 s10, s10, {L_KP + 4094 - 192 - 3584}")
    e("v_lshlrev_b32 v9, 1, v6\nv_sub_u32 v9, v8, v9\nv_add_u32 v9, s10, v9")
    e(f"v_and_b32 v45, 1, v6\nv_mov_b32 v46, 4158\nv_cmp_eq_u32 vcc, 0, v45\nv_cndmask_b32 v45, 0, v46, vcc\nv_add_u32 v{vA[0]}, v9, v45")
    for k in range(1, 4): e(f"v_add_u32 v{vA[k]}, {1024*k}, v{vA[0]}")
    e(f"s_mul_i32 s10, s8, {UC}\ns_sub_u32 s10, s10, s11\ns_add_u32 s10, s10, {L_U + 480 - 192}")
    e(f"v_lshlrev_b32 v9, 5, v6\nv_add3_u32 v{vB}, v9, v8, s10")
    for k in range(32): e(f"v_mov_b32 v{ACC+k}, 0")
    def loads(q):
        buf = q & 1; L = []
        def la(ch):
            k = (7 - ch) // 2; par = (7 - ch) % 2
            od = 128*par + 16*(3 - q)
            r = AB[buf] + 4*ch
            return [f"ds_read2_b32 {vr(r,2)}, v{vA[k]} offset0:{od} offset1:{od+1}", f"ds_read2_b32 {vr(r+2,2)}, v{vA[k]} offset0:{od+2} offset1:{od+3}"]
        def lb(tp):
            return [f"ds_read_b128 {vr(BB[buf]+4*tp,4)}, v{vB} offset:{512*tp + 64*(3-q)}"]
        for tp in range(8): L += lb(tp)
        for ch in range(8): L += la(ch)
        return L
    for l in loads(0): e(l)
    for q in range(4):
        buf = q & 1
        nxt = loads(q + 1) if q < 3 else []
        e("s_waitcnt lgkmcnt(0)")
        ms = []
        for ch in range(8):
            for tp in range(8 - ch):
                T = tp + ch
                ms.append(f"v_mfma_f32_16x16x32_bf16 {vr(ACC+4*T,4)}, {vr(AB[buf]+4*ch,4)}, {vr(BB[buf]+4*tp,4)}, {vr(ACC+4*T,4)}")
        for k, m in enumerate(ms):
            e(m)
            if nxt and k < 24: e(nxt[k])
    e.stamp()
    e(f"s_mul_i32 s10, s{sW}, {YW}\ns_add_u32 s10, s10, {L_Y}\nv_mul_u32_u24 v9, {YG}, v7\nv_lshlrev_b32 v45, 4, v6\nv_add3_u32 v9, v9, v45, s10")
    e("s_nop 7")
    for T in range(8): e(f"ds_write_b128 v9, {vr(ACC+4*T,4)} offset:{YT*T}")
    e("s_waitcnt lgkmcnt(0)\ns_barrier")
    e(f"v_mul_u32_u24 v8, {2*YW}, v4\nv_lshrrev_b32 v9, 5, v5\nv_mul_u32_u24 v9, {YT}, v9\nv_add_u32 v8, v8, v9")
    e(f"v_bfe_u32 v9, v5, 1, 4\nv_lshlrev_b32 v9, 4, v9\nv_and_b32 v45, 1, v5\nv_mul_u32_u24 v45, {2*YG}, v45\nv_add3_u32 v8, v8, v9, v45\nv_add_u32 v8, {L_Y}, v8")
    for h in range(2):
        for wv in range(2):
            for d in range(2):
                e(f"ds_read_b128 {vr(96+16*h+8*wv+4*d,4)}, v8 offset:{wv*YW + 4*h*YT + d*YG}")
    e(f"s_lshl_b32 s10, s{sDSK}, 16\ns_and_b32 s11, s{sDSK}, 0xffff0000\nv_mov_b32 v46, s10\nv_mov_b32 v47, s11\nv_cmp_eq_u32 vcc, 0, v4\nv_cndmask_b32 v46, v47, v46, vcc")
    e(f"v_lshrrev_b32 v8, 2, v5\nv_mul_u32_u24 v8, {XT_BYTES}, v8\nv_and_b32 v9, 3, v5\nv_lshlrev_b32 v9, 4, v9\nv_lshlrev_b32 v45, 6, v4\nv_add3_u32 v8, v8, v9, v45")
    e(f"s_lshl_b32 s8, s2, 7\ns_add_u32 s8, s8, s{sXMID}\nv_add_u32 v8, s8, v8\nv_add_u32 v9, {32*XT_BYTES}, v8")
    e("s_waitcnt lgkmcnt(0)")
    for h in range(2):
        for k in range(8):
            y0 = 96 + 16*h + k; y1 = y0 + 8
            x = vXR + 4*h + k//2; u = vUR + 4*h + k//2
            e(f"v_add_f32 v{y0}, v{y0}, v{y1}")
            if k % 2 == 0: e(f"v_lshlrev_b32 v64, 16, v{x}\nv_lshlrev_b32 v65, 16, v{u}")
            else: e(f"v_and_b32 v64, 0xffff0000, v{x}\nv_and_b32 v65, 0xffff0000, v{u}")
            e(f"v_add_f32 v{y0}, v{y0}, v64\nv_fmac_f32 v{y0}, v65, v46")
        for k in range(4): e(f"v_cvt_pk_bf16_f32 v{66+4*h+k}, v{96+16*h+2*k}, v{96+16*h+2*k+1}")
        e(f"global_store_dwordx4 v{8+h}, {vr(66+4*h,4)}, {sp(pWS)} sc1")
    e.stamp()
    return False

L_ST = L_MISC
def trlane(e, dst, t1, t2, perm=False):
    e(f"v_lshrrev_b32 v{dst}, 5, v1\nv_lshlrev_b32 v{dst}, {8 if perm else 9}, v{dst}")
    e(f"v_bfe_u32 v{t1}, v1, 2, 2\nv_lshlrev_b32 v{t1}, 6, v{t1}\nv_add_u32 v{dst}, v{dst}, v{t1}")
    e(f"v_bfe_u32 v{t1}, v1, 4, 1\nv_lshlrev_b32 v{t1}, 5, v{t1}\nv_and_b32 v{t2}, 3, v1\nv_lshlrev_b32 v{t2}, 3, v{t2}\nv_add3_u32 v{dst}, v{dst}, v{t1}, v{t2}")

def load_wfrags(e, sbase_reg, vt):
    for gam in range(4):
        e(f"s_add_u32 s8, s{sW}, {gam}\ns_and_b32 s8, s8, 3\ns_mul_i32 s8, s8, 7168\ns_add_u32 s8, s8, s{sbase_reg}\nv_add_u32 v{vt}, s8, v2\nv_add_u32 v{vt+1}, 4096, v{vt}")
        for u in range(2):
            if u == 1: e(f"v_add_u32 v{vt}, 28672, v{vt}\nv_add_u32 v{vt+1}, 28672, v{vt+1}")
            for k in range(7):
                i = 7*gam + k
                e(f"global_load_dwordx4 {ar(112*u+4*i,4)}, v{vt + (k//4)}, {sp(pWS)} offset:{1024*(k%4)} sc1")
            if gam == 1 and u == 0: pass
        if gam % 2 == 1 and gam < 3: e("s_waitcnt vmcnt(20)")

def gemm1(e):
    o = e.opt
    e(f"s_lshl_b32 s60, s{sJ}, 3\ns_lshl_b32 s8, s{sW}, 1\ns_add_u32 s60, s60, s8\ns_mul_i32 s60, s60, 28672\ns_add_u32 s60, s60, {WS_WP}")
    e(f"s_mul_i32 s61, s{sGRP}, {XT_BYTES}\ns_add_u32 s61, s61, s{sXMID}\ns_mul_i32 s9, s{sW}, 7168\ns_add_u32 s61, s61, s9\ns_add_u32 s62, s9, {L_XT}")
    e("v_add_u32 v8, s61, v2")
    for p in range(4):
        for k in range(7):
            e(f"s_add_u32 m0, s62, {p*XT_BYTES + 1024*k}")
            e(f"global_load_lds_dwordx4 v8, {sp(pWS)} sc1")
            e(f"v_add_u32 v8, {1024 if k < 6 else 16*XT_BYTES - 6144}, v8")
    e("s_waitcnt vmcnt(0)")
    load_wfrags(e, 60, 8)
    vBA = [40, 41, 42, 43]
    trlane(e, 44, 45, 46)
    for gam in range(4):
        e(f"s_add_u32 s8, s{sW}, {gam}\ns_and_b32 s8, s8, 3\ns_mul_i32 s8, s8, 7168\ns_add_u32 s8, s8, {L_XT}\nv_add_u32 v{vBA[gam]}, s8, v44")
    vBB = [48, 49, 50, 51]
    for gam in range(4): e(f"v_add_u32 v{vBB[gam]}, {2*XT_BYTES}, v{vBA[gam]}")
    e(f"s_mul_i32 s8, s{sGRP}, 114688\ns_add_u32 s8, s8, s{sHOFF}\ns_lshl_b32 s9, s{sJ}, 2\ns_add_u32 s9, s9, s{sW}\ns_lshl_b32 s9, s9, 11\ns_add_u32 s8, s8, s9\nv_add_u32 v52, s8, v2")
    e(f"v_lshlrev_b32 v53, 2, v1\ns_lshl_b32 s8, s{sW}, 8\nv_add_u32 v54, s8, v53")
    e("s_waitcnt vmcnt(0)\ns_barrier")
    e.stamp()
    ACC = [64, 96]; SB = 144; RB = 128
    def breg(i): return SB + 4*i if i < 7 else RB + 4*((i - 7) % 4)
    def bload(p, i):
        gam, k = divmod(i, 7)
        a = (vBA if p < 2 else vBB)[gam]; off = (p % 2)*XT_BYTES + 1024*k
        r = breg(i)
        return [f"ds_read_b64_tr_b16 {vr(r,2)}, v{a} offset:{off}", f"ds_read_b64_tr_b16 {vr(r+2,2)}, v{a} offset:{off+256}"]
    def epilogue(p):
        A = ACC[p % 2]; L = []
        L.append(f"ds_read2st64_b32 v[56:57], v53 offset0:{(L_ST + 1024*p)//256} offset1:{(L_ST + 1024*p)//256 + 1}")
        L.append(f"ds_read2st64_b32 v[58:59], v53 offset0:{(L_ST + 1024*p)//256 + 2} offset1:{(L_ST + 1024*p)//256 + 3}")
        L.append("s_waitcnt lgkmcnt(0)")
        L += ["v_add_f32 v56, v56, v57", "v_add_f32 v58, v58, v59", "v_add_f32 v56, v56, v58", "v_mov_b32 v57, v56", "s_nop 1", "v_permlane32_swap_b32 v56, v57"]
        L += [f"v_mul_f32 v56, s62, v56", f"v_fma_f32 v57, v57, s62, v60", "v_fma_f32 v57, -v56, v56, v57", "v_rsq_f32 v58, v57", "v_sqrt_f32 v59, v57", "s_nop 0",
              f"v_mul_f32 v58, s63, v58"]
        for r in range(16):
            g = A + r; u = A + 16 + r
            L += [f"v_mul_f32 v{g}, v58, v{g}", f"v_exp_f32 v{g}, v{g}", "s_nop 0", f"v_fma_f32 v{g}, v{g}, v59, v59", f"v_rcp_f32 v{g}, v{g}", "s_nop 0", f"v_mul_f32 v{g}, v{g}, v{u}"]
        for r in range(8): L.append(f"v_cvt_pk_bf16_f32 v{A+16+r}, v{A+2*r}, v{A+2*r+1}")
        L.append(f"global_store_dwordx4 v52, {vr(A+16,4)}, {sp(pWS)} sc1")
        L.append(f"global_store_dwordx4 v52, {vr(A+20,4)}, {sp(pWS)} offset:1024 sc1")
        L.append(f"v_add_u32 v52, {16*114688}, v52")
        return L
    e(f"s_mov_b32 s62, {hex(f2u(1.0/448))}\ns_mov_b32 s63, {hex(f2u(-1.4426950408889634))}\nv_mov_b32 v60, {hex(f2u(1e-5))}")
    for p in range(4):
        A = ACC[p % 2]
        for i in range(10):
            for l in bload(p, i): e(l)
        for i in range(28):
            issued = max(10, min(28, i + 3 + 1 - 0)) if i >= 7 else 10
            issued = min(issued, 28)
            e(f"s_waitcnt lgkmcnt({min(15, 2*(issued - i - 1))})")
            r = breg(i)
            e(f"v_mfma_f32_32x32x16_bf16 {vr(A,16)}, {ar(4*i,4)}, {vr(r,4)}, {'0' if i==0 else vr(A,16)}")
            e(f"v_mfma_f32_32x32x16_bf16 {vr(A+16,16)}, {ar(112+4*i,4)}, {vr(r,4)}, {'0' if i==0 else vr(A+16,16)}")
            if i == 6:
                e("v_mov_b32 v61, 0\nv_mov_b32 v62, 0")
                for k in range(28): e(f"v_dot2_f32_bf16 v61, v{SB+k}, s{sONES}, v61")
                for k in range(28): e(f"v_dot2_f32_bf16 v62, v{SB+k}, v{SB+k}, v62")
                e("s_nop 2\nv_permlane32_swap_b32 v61, v62\ns_nop 1\nv_add_f32 v61, v61, v62")
                e(f"ds_write_b32 v54, v61 offset:{L_ST + 1024*p}")
            nx = i + 3 + 1 if i >= 6 else None
            if i >= 6 and i + 4 < 28:
                for l in bload(p, i + 4): e(l)
        e("s_waitcnt lgkmcnt(0)\ns_barrier")
        for l in epilogue(p): e(l)
    e.stamp()
    return False

L_RB = L_XT
L_RES = L_MISC
L_OT = L_MISC + 12288
L_OT = L_MISC + 8192
def gemm2(e):
    o = e.opt
    e(f"s_cmp_ge_u32 s{sJ}, 7\ns_cselect_b32 s60, 1, 0\ns_cselect_b32 s8, 7, 0\ns_sub_u32 s61, s{sJ}, s8")
    e(f"s_lshl_b32 s8, s61, 3\ns_add_u32 s8, s8, s{sW}\ns_add_u32 s8, s8, 112\ns_mul_i32 s8, s8, 28672\ns_add_u32 s8, s8, {WS_WP}")
    e("v_add_u32 v8, s8, v2")
    for m in range(2):
        for k in range(28):
            e(f"global_load_dwordx4 {ar(112*m+4*k,4)}, v8, {sp(pWS)} offset:{1024*(k%4)} sc1")
            if k % 4 == 3: e(f"v_add_u32 v8, 4096, v8")
        if m == 0: e(f"v_add_u32 v8, {3*28672}, v8")
    e(f"s_lshl_b32 s62, s60, 4\ns_add_u32 s62, s62, s{sGRP}")
    e(f"s_mul_i32 s8, s62, {XT_BYTES}\ns_add_u32 s8, s8, s{sXMID}\ns_lshl_b32 s9, s61, 12\ns_add_u32 s8, s8, s9\ns_lshl_b32 s9, s{sW}, 10\ns_add_u32 s8, s8, s9")
    e(f"v_add_u32 v9, s8, v2\ns_add_u32 m0, s9, {L_RES}")
    e(f"global_load_lds_dwordx4 v9, {sp(pWS)} sc1")
    e(f"v_add_u32 v9, {32*XT_BYTES}, v9\ns_add_u32 m0, s9, {L_RES+4096}")
    e(f"global_load_lds_dwordx4 v9, {sp(pWS)} sc1")
    e("s_waitcnt vmcnt(30)")
    HB = 128
    e(f"s_mul_i32 s8, s62, 114688\ns_add_u32 s8, s8, s{sHOFF}\ns_mul_i32 s9, s{sW}, 28672\ns_add_u32 s8, s8, s9\nv_add_u32 v10, s8, v2")
    e(f"v_add_u32 v11, {32*114688}, v10")
    for k in range(28):
        e(f"global_load_dwordx4 {vr(HB+4*k,4)}, v10, {sp(pWS)} offset:{1024*(k%4)} sc1")
        if k % 4 == 3: e("v_add_u32 v10, 4096, v10")
    trlane(e, 44, 45, 46, perm=True)
    e(f"s_lshl_b32 s9, s{sW}, 10\nv_add_u32 v44, s9, v44")
    e(f"s_lshl_b32 s9, s{sW}, 11\nv_add_u32 v45, s9, v2")
    e(f"s_lshl_b32 s9, s{sW}, 13\nv_add_u32 v46, s9, v2")
    e(f"v_and_b32 v47, 7, v1\nv_lshlrev_b32 v47, 5, v47\nv_bfe_u32 v48, v1, 3, 2\nv_mul_u32_u24 v48, 384, v48\nv_lshrrev_b32 v49, 5, v1\nv_lshlrev_b32 v49, 3, v49\nv_add3_u32 v47, v47, v48, v49")
    e(f"s_mul_i32 s9, s{sW}, 1536\nv_add_u32 v47, s9, v47")
    e(f"v_bfe_u32 v48, v1, 2, 2\nv_lshlrev_b32 v48, 5, v48\nv_lshrrev_b32 v49, 4, v1\nv_mul_u32_u24 v49, 384, v49\nv_and_b32 v50, 3, v1\nv_lshlrev_b32 v50, 3, v50\nv_add3_u32 v48, v48, v49, v50")
    e(f"v_add_u32 v48, s9, v48")
    e(f"s_mul_i32 s8, s62, {XT_BYTES}\ns_add_u32 s8, s8, s{sXOUT}\ns_lshl_b32 s9, s61, 12\ns_add_u32 s8, s8, s9\ns_lshl_b32 s9, s{sW}, 10\ns_add_u32 s8, s8, s9")
    e(f"v_and_b32 v49, 15, v1\nv_lshlrev_b32 v49, 6, v49\nv_lshrrev_b32 v50, 4, v1\nv_lshlrev_b32 v50, 4, v50\nv_add3_u32 v49, v49, v50, s8")
    e(f"v_and_b32 v50, 31, v1\nv_lshlrev_b32 v50, 3, v50\nv_lshrrev_b32 v51, 5, v1\nv_lshlrev_b32 v51, 2, v51\ns_lshl_b32 s8, s62, 8\ns_add_u32 s8, s8, {WS_ST3}\nv_add3_u32 v50, v50, v51, s8")
    e(f"v_and_b32 v51, 31, v1\ns_lshl_b32 s8, s62, 5\nv_add_u32 v51, s8, v51\nv_mul_u32_u24 v51, 896, v51\nv_lshrrev_b32 v52, 5, v1\nv_lshlrev_b32 v52, 4, v52\ns_lshl_b32 s8, s61, 7\ns_lshl_b32 s9, s{sW}, 5\ns_add_u32 s8, s8, s9\nv_add3_u32 v51, v51, v52, s8")
    ACC = 64
    for sub in range(2):
        for k in range(28):
            if sub == 0: e(f"s_waitcnt vmcnt({27})")
            else: e(f"s_waitcnt vmcnt({27-k + (0)})") if True else None
            r = HB + 4*k
            e(f"v_mfma_f32_32x32x16_bf16 {vr(ACC,16)}, {ar(4*k,4)}, {vr(r,4)}, {'0' if k==0 else vr(ACC,16)}")
            e(f"v_mfma_f32_32x32x16_bf16 {vr(ACC+16,16)}, {ar(112+4*k,4)}, {vr(r,4)}, {'0' if k==0 else vr(ACC+16,16)}")
            if sub == 0:
                e(f"global_load_dwordx4 {vr(r,4)}, v11, {sp(pWS)} offset:{1024*(k%4)} sc1")
                if k % 4 == 3: e("v_add_u32 v11, 4096, v11")
        if sub == 0: e.stamp()
        e("s_nop 7\ns_nop 3")
        for wd in range(4):
            rr = ACC + 16*(wd >> 1) + 8*(wd & 1)
            e(f"ds_write_b128 v45, {vr(rr,4)} offset:{L_RB + wd*8192}\nds_write_b128 v45, {vr(rr+4,4)} offset:{L_RB + wd*8192 + 1024}")
        e("s_waitcnt lgkmcnt(0)\ns_barrier")
        for ws_ in range(4):
            e(f"ds_read_b128 {vr(96+8*ws_,4)}, v46 offset:{L_RB + ws_*2048}\nds_read_b128 {vr(100+8*ws_,4)}, v46 offset:{L_RB + ws_*2048 + 1024}")
        e(f"ds_read_b64_tr_b16 v[56:57], v44 offset:{L_RES + 4096*sub}\nds_read_b64_tr_b16 v[58:59], v44 offset:{L_RES + 4096*sub + 512}")
        e("s_waitcnt lgkmcnt(0)\ns_barrier")
        for r in range(8):
            e(f"v_add_f32 v{96+r}, v{96+r}, v{104+r}\nv_add_f32 v{112+r}, v{112+r}, v{120+r}\nv_add_f32 v{96+r}, v{96+r}, v{112+r}")
            x = 56 + r//2
            if r % 2 == 0: e(f"v_lshlrev_b32 v60, 16, v{x}")
            else: e(f"v_and_b32 v60, 0xffff0000, v{x}")
            e(f"v_add_f32 v{96+r}, v{96+r}, v60")
        for k in range(4): e(f"v_cvt_pk_bf16_f32 v{56+k}, v{96+2*k}, v{96+2*k+1}")
        fin = e.lab('fin'); jn = e.lab('g2j')
        e(f"s_cmp_lg_u32 s{sLAYER}, 0\ns_cbranch_scc1 {fin}")
        e(f"ds_write_b64 v47, v[56:57] offset:{L_OT}\nds_write_b64 v47, v[58:59] offset:{L_OT+16}")
        e("v_mov_b32 v60, 0\nv_mov_b32 v61, 0")
        for k in range(4): e(f"v_dot2_f32_bf16 v60, v{56+k}, s{sONES}, v60")
        for k in range(4): e(f"v_dot2_f32_bf16 v61, v{56+k}, v{56+k}, v61")
        e("s_nop 2\nv_permlane32_swap_b32 v60, v61\ns_nop 1\nv_add_f32 v60, v60, v61")
        e(f"global_atomic_add_f32 v50, v60, {sp(pWS)} sc1")
        e("s_waitcnt lgkmcnt(0)")
        e(f"ds_read_b64_tr_b16 v[96:97], v48 offset:{L_OT}\nds_read_b64_tr_b16 v[98:99], v48 offset:{L_OT+128}")
        e("s_waitcnt lgkmcnt(0)")
        e(f"global_store_dwordx4 v49, v[96:99], {sp(pWS)} sc1")
        e(f"s_branch {jn}")
        e(f"{fin}:")
        e("s_nop 1\nv_permlane32_swap_b32 v56, v58\nv_permlane32_swap_b32 v57, v59")
        e(f"global_store_dwordx4 v51, v[56:59], {sp(pOUT)}")
        e(f"{jn}:")
        if sub == 0:
            e(f"v_add_u32 v49, {32*XT_BYTES}, v49\nv_add_u32 v50, {32*256}, v50\nv_add_u32 v51, {1024*896}, v51")
    e.stamp()
    return False

def main():
    ap = argparse.ArgumentParser()
    ap.add_argument('-o', default='k.s')
    ap.add_argument('--stop', default='')
    ap.add_argument('--stamps', action='store_true')
    o = ap.parse_args()
    e = G(o)
    p0(e)
    done = False
    if o.stop == 'p0':
        e.dump_lds(0, 20480); e.end(); done = True
    if not done:
        e(f"s_mov_b32 s{sLAYER}, 0\ns_mov_b32 s{sXIN}, {WS_X[0]}\ns_mov_b32 s{sXMID}, {WS_X[0]}\ns_mov_b32 s{sXOUT}, {WS_X[1]}\ns_mov_b32 s{sHOFF}, {WS_H[0]}\ns_mov_b32 s{sSTOFF}, {WS_ST1}")
        e("s_mov_b32 s53, 0")
        e("L_layer:")
        done = conv(e)
    if not done:
        gbar_dyn(e, 0)
        if o.stop == 'conv1': e.end(); done = True
    if not done:
        e.stamp()
        done = gemm1(e)
    if not done:
        e(f"s_lshl_b32 s54, s{sGRP}, 7\ns_add_u32 s54, s54, s53\ns_add_u32 s54, s54, {WS_CB + 2*0x2000}")
        grpbar(e, 54)
        if o.stop == 'g1': e.end(); done = True
    if not done:
        e.stamp()
        done = gemm2(e)
        e(f"s_cmp_lg_u32 s{sLAYER}, 0\ns_cbranch_scc1 L_done")
        gbar_dyn(e, 1)
        if o.stop == 'g2': e("L_done:"); e.end(); done = True
    if not done:
        e(f"s_mov_b32 s{sLAYER}, 1\ns_mov_b32 s{sXIN}, {WS_X[1]}\ns_mov_b32 s{sXMID}, {WS_X[2]}\ns_mov_b32 s{sHOFF}, {WS_H[1]}\ns_mov_b32 s{sSTOFF}, {WS_ST3}\ns_mov_b32 s53, {3*0x2000}")
        e("s_branch L_layer")
        e("L_done:")
        e.end()
    e("L_exit:\ns_endpgm")
    lines, nins = hz.fix(e.L)
    errs = hz.check_waits(lines)
    for x in errs[:40]: print("WAITERR", x, file=sys.stderr)
    hdr = f"""; fused persistent kernel (generated by dev/k/gen.py)
; @launch grid=({NWG},1,1) block=(256,1,1) lds={LDS_TOTAL}
.amdgcn_target "amdgcn-amd-amdhsa--gfx950"
.text
.globl {NAME}
.p2align 8
.type {NAME},@function
{NAME}:
"""
    ftr = f"""
.section .rodata,"a"
.p2align 6
.amdhsa_kernel {NAME}
  .amdhsa_next_free_vgpr 512
  .amdhsa_next_free_sgpr 102
  .amdhsa_accum_offset 256
  .amdhsa_group_segment_fixed_size 0
  .amdhsa_kernarg_size 112
  .amdhsa_user_sgpr_count 2
  .amdhsa_user_sgpr_kernarg_segment_ptr 1
  .amdhsa_system_sgpr_workgroup_id_x 1
.end_amdhsa_kernel
"""
    open(o.o, 'w').write(hdr + '\n'.join(lines) + ftr)
    print(f"wrote {o.o}: {len(lines)} lines, {nins} nop states inserted, {len(errs)} wait errors", file=sys.stderr)

def gbar_dyn(e, k):
    skip = e.lab('gb')
    e("s_waitcnt vmcnt(0)\ns_barrier")
    e(f"s_cmp_lg_u32 s{sW}, 0\ns_cbranch_scc1 {skip}")
    e("s_mov_b64 exec, 0xff")
    base = WS_CB + k * 0x2000
    e(f"v_lshlrev_b32 v4, 10, v1\ns_lshl_b32 s{sT}, s{sX}, 7\ns_add_u32 s{sT}, s{sT}, {base}\ns_add_u32 s{sT}, s{sT}, s53\nv_add_u32 v4, s{sT}, v4\nv_mov_b32 v5, 1")
    e(f"global_atomic_add v4, v5, {sp(pWS)} sc1")
    e(f"v_lshlrev_b32 v4, 7, v1\ns_lshl_b32 s{sT}, s{sX}, 10\ns_add_u32 s{sT}, s{sT}, {base}\ns_add_u32 s{sT}, s{sT}, s53\nv_add_u32 v4, s{sT}, v4")
    e("s_waitcnt vmcnt(0)")
    poll(e, 4, 28, 0xff)
    e("s_mov_b64 exec, -1")
    e(f"{skip}:\ns_barrier")

if __name__ == '__main__':
    main()
```

```python
import re, sys
def sp(n): return f"s[{n}:{n+1}]"
def vr(n, k=1): return f"v{n}" if k == 1 else f"v[{n}:{n+k-1}]"
def ar(n, k=1): return f"a{n}" if k == 1 else f"a[{n}:{n+k-1}]"
def f2u(x):
    import struct; return struct.unpack('<I', struct.pack('<f', x))[0]
def split(s):
    out = []
    for l in s.split('\n'):
        l = l.strip()
        if l: out.append(l)
    return out
def is_vm(l): return l.startswith(('global_', 'buffer_'))
def is_lg(l): return l.startswith('ds_')
TRANS = ('v_exp_f32','v_log_f32','v_rcp_f32','v_rsq_f32','v_sqrt_f32','v_sin_f32','v_cos_f32')
def cost(l):
    if l.endswith(':') or l.startswith(('CONDB','CONDE','LOOPB','LOOPE')): return 0
    if l.startswith(TRANS): return 8
    if l.startswith(('WAIT', 's_waitcnt')): return 2
    return 4
def weave(anchors, items, budget, tailflush=True):
    its = sorted([(it[0], k, it[1], len(it) > 2) for k, it in enumerate(items)], key=lambda t: (t[0], t[1]))
    out = []; q = []; ptr = 0
    n = len(anchors)
    while ptr < len(its) and its[ptr][0] < 0:
        out += its[ptr][2]; ptr += 1
    for a in range(n):
        out += anchors[a]
        while ptr < len(its) and its[ptr][0] < a + 1:
            q.append(its[ptr]); ptr += 1
        used = 0; rest = []
        blocked = False
        for it in q:
            c = sum(cost(l) for l in it[2])
            if it[3] or (not blocked and (used + c <= budget or used == 0)):
                out += it[2]; used += c
            else:
                rest.append(it); blocked = True
        q = rest
    for it in q: out += it[2]
    while ptr < len(its):
        out += its[ptr][2]; ptr += 1
    return out
def spread(lines_groups, p0, p1):
    n = len(lines_groups)
    return [(p0 + (p1 - p0) * k / max(n, 1), g if isinstance(g, list) else [g]) for k, g in enumerate(lines_groups)]
def resolve(L):
    lb = [i for i, l in enumerate(L) if l == 'LOOPB']; le = [i for i, l in enumerate(L) if l == 'LOOPE']
    assert len(lb) <= 1 and len(lb) == len(le)
    if lb: order = list(range(0, le[0] + 1)) + list(range(lb[0], len(L)))
    else: order = list(range(len(L)))
    need = {}
    hist = {'vm': [], 'lg': []}
    condstack = []; rid = 0
    errs = []
    def younger(h, k):
        n = 0
        cur = set(condstack)
        for x in h[k+1:]:
            if set(x['cond']) <= cur: n += 1
        return n
    def apply_wait(kind, n):
        h = hist[kind]
        for k in range(len(h)):
            if not h[k]['done'] and younger(h, k) >= n and not condstack: h[k]['done'] = True
    for idx in order:
        l = L[idx]
        if l == 'CONDB': rid += 1; condstack.append(rid); continue
        if l == 'CONDE': condstack.pop(); continue
        if l.startswith('WAITVM') or l.startswith('WAITLG'):
            kind = 'vm' if l.startswith('WAITVM') else 'lg'
            tags = l.split()[1:]
            h = hist[kind]; best = None; found = False
            for t in tags:
                opt = t.endswith('?'); t = t.rstrip('?')
                ks = [k for k, x in enumerate(h) if x['tag'] == t]
                if not ks:
                    if not opt: errs.append(f'{l}: tag {t} never issued')
                    continue
                found = True
                for k in ks:
                    if h[k]['done']: continue
                    y = younger(h, k)
                    best = y if best is None else min(best, y)
            if best is not None:
                cap = 63 if kind == 'vm' else 15
                best = min(best, cap)
                need[idx] = min(need.get(idx, 99), best)
                apply_wait(kind, best)
            else:
                need.setdefault(idx, 99)
            continue
        m = re.match(r's_waitcnt\b(.*)', l)
        if m:
            a = re.search(r'vmcnt\((\d+)\)', l); b = re.search(r'lgkmcnt\((\d+)\)', l)
            if a: apply_wait('vm', int(a.group(1)))
            if b: apply_wait('lg', int(b.group(1)))
            continue
        t = None
        if '@@' in l: t = l.split('@@')[1].strip()
        if is_vm(l): hist['vm'].append(dict(tag=t, cond=tuple(condstack), done=False))
        elif is_lg(l): hist['lg'].append(dict(tag=t, cond=tuple(condstack), done=False))
    out = []
    for idx, l in enumerate(L):
        if l in ('CONDB', 'CONDE', 'LOOPB', 'LOOPE'): continue
        if l.startswith('WAITVM'):
            n = need.get(idx, 99)
            if n < 99: out.append(f's_waitcnt vmcnt({n})')
            continue
        if l.startswith('WAITLG'):
            n = need.get(idx, 99)
            if n < 99: out.append(f's_waitcnt lgkmcnt({n})')
            continue
        if '@@' in l: l = l.split('@@')[0].rstrip()
        out.append(l)
    return out, errs
```

```python
import sys, os, argparse
sys.path.insert(0, os.path.dirname(os.path.abspath(__file__)))
import hz
from fw import *
NAME = "interleave_layers__ssm_conv_s4d__glu_gated_glu__prompt_kernel"
NWG = 224
WS_W1 = 0x0
WS_WD = 112 * 28672
WS_X = [0x0600000, 0x0800000, 0x0A00000, 0x0C00000]
WS_H = [0x1000000, 0x1800000]
WS_Z = 0x2000000
WS_ST3 = WS_Z
WS_ST2 = [WS_Z + 0x4000, WS_Z + 0x8000]
WS_FL = [WS_Z + 0xC000, WS_Z + 0x16000]
F_CXA, F_CXB, F_CYA, F_CYB, F_CH = 0, 0x2000, 0x4000, 0x6000, 0x8000
WS_ST1 = 0x2100000
WS_DBG = 0x3000000
WS_STAMP = 0x3800000
XT = 28672
HT = 114688
L_KP = 0; KPC = 8320; KPO = 4160
L_MISC = 16640
L_U = L_MISC; UC = 4608
L_OT = L_U + 2 * UC
L_XT = 32768
L_BASE = L_XT + 2 * XT
L_YA = L_BASE + 16384
L_YB = L_YA + 16384
L_SX = 147456
LDS_TOTAL = 163840
sW, sX, sGRP, sJ, sDT, sPP = 3, 4, 5, 6, 7, 8
sT = 9
pAU, pLOGA, pAIM, pCRE, pCIM, pLDT, pDSK = 16, 18, 20, 22, 24, 26, 28
pWG, pWU, pWD, pOUT, pDBG, pWS = 32, 34, 36, 38, 40, 42
sLDT, sDSK = 44, 45
sLAYER = 46
sONES = 47
sXIN, sXMID, sXOUT, sHOFF, sSTOFF, sFL, sST2, sTGT = 48, 49, 50, 51, 52, 53, 54, 55
sC = 56
sW1B, sWDB, sHA, sHB, sW7, sCH = 58, 59, 60, 61, 62, 63
sSTAMP = 64

class G:
    def __init__(self, opt):
        self.L = []; self.opt = opt; self.nlab = 0; self.names = []; self.seg = []; self.tail = []; self.nst = 0
    def __call__(self, s):
        if isinstance(s, list): self.L += s
        else: self.L += split(s)
    def lab(self, p='L'):
        self.nlab += 1; return f"{p}_{self.nlab}"
    def st(self, name):
        if not self.opt.stamps: return []
        k = len(self.seg); assert k < 18
        self.seg.append(name)
        return [f"s_memtime s[{sSTAMP+2*k}:{sSTAMP+2*k+1}]"]
    def stamp(self, name): self(self.st(name))
    def dump_stamps(self, segidx_sreg=None, segidx=0):
        if not self.opt.stamps: return
        n = len(self.seg)
        self.names.append(list(self.seg)); self.seg = []
        e = self
        e("s_waitcnt lgkmcnt(0)")
        e(f"s_lshl_b32 s100, s2, 2\ns_add_u32 s100, s100, s{sW}\ns_lshl_b32 s100, s100, 8\ns_add_u32 s100, s100, {WS_STAMP}")
        if segidx_sreg is not None: e(f"s_mul_i32 s101, s{segidx_sreg}, 80\ns_add_u32 s100, s100, s101")
        e(f"s_add_u32 s100, s100, {segidx*80}")
        e("v_mov_b32 v63, s100")
        for k in range(n):
            e(f"v_mov_b32 v62, s{sSTAMP+2*k}\nCONDB\nglobal_store_dword v63, v62, {sp(pWS)} offset:{4*k}\nCONDE\ns_nop 0")
    def dump_lds(self, base, nbytes, dst=0):
        e = self
        e("s_waitcnt vmcnt(0) lgkmcnt(0)\ns_barrier")
        e(f"v_lshlrev_b32 v4, 4, v0\ns_mul_i32 s{sT}, s2, {nbytes}\ns_add_u32 s{sT}, s{sT}, {WS_DBG+dst}\nv_add_u32 v5, s{sT}, v4\nv_add_u32 v4, {base}, v4")
        for k in range(nbytes // 4096):
            e(f"ds_read_b128 v[64:67], v4 offset:{(k*4096) % 65536}\ns_waitcnt lgkmcnt(0)\nglobal_store_dwordx4 v5, v[64:67], {sp(pWS)}\nv_add_u32 v5, 4096, v5\ns_nop 1")
            if (k + 1) * 4096 % 65536 == 0: e("v_add_u32 v4, 65536, v4")
    def end(self):
        self("s_waitcnt vmcnt(0)\ns_endpgm")

LOG2E = 0x3FB8AA3B
INV2PI = 0x3E22F983
SPIN = 20000

def slow_poll(e, chk_lines, reload_lines, name):
    lp = e.lab('sp' + name); back = e.lab('bk' + name)
    e.tail += [f"{lp}:", f"s_mov_b32 s{sT+6}, {SPIN}", f"{lp}_l:"] + reload_lines + ["s_waitcnt vmcnt(0)"] + chk_lines + \
              [f"s_cbranch_vccz {back}", f"s_sub_u32 s{sT+6}, s{sT+6}, 1", f"s_cmp_lg_u32 s{sT+6}, 0", f"s_cbranch_scc1 {lp}_l", f"s_branch {back}"]
    return chk_lines + [f"s_cbranch_vccnz {lp}", f"{back}:"]

def cmul_group(items, T):
    L = []
    for k, (d, a, b) in enumerate(items):
        L.append(f"v_pk_mul_f32 {vr(T+2*k,2)}, {vr(a,2)}, {vr(b,2)} op_sel:[0,0] op_sel_hi:[0,1]")
    for k, (d, a, b) in enumerate(items):
        L.append(f"v_pk_fma_f32 {vr(d,2)}, {vr(a,2)}, {vr(b,2)}, {vr(T+2*k,2)} op_sel:[1,1,0] op_sel_hi:[1,0,1] neg_lo:[1,0,0]")
    return L

L_PK = 0
L_PS = 32768 - 512 + 0
L_PS = 28672
L_BS = [L_XT, L_XT + 55120]
ROWB = 1040
L_AS_OFF = 32 * ROWB
L_KX = L_MISC
TB0 = 0x3E80
L_TBL_ADD = [1024, 1024 + 4096]
vL16 = 2
vXA = 10
vSTA = 11
vONE = 12
vSIG = 13
vPOL = 14
vUW = 15
vBW = 16
vKA = 17
vUB = 21
vYW = 22
vYR = 23
vBR = 24
vYST = 25
vTR = 26
vTD = 27
vHS = 28
vL8 = 29
vRES = 30
vRW = 31
vRR = 32
vOTW = 33; vOTR = 34
vXST = 35
vSTAT = 36
vOST = 37
vHL = 38
vDS = 39
vDS1 = 40

def p0(e):
    o = e.opt
    e(f"s_cmp_ge_u32 s2, {NWG}\ns_cbranch_scc1 L_exit")
    e("s_load_dwordx16 s[16:31], s[0:1], 0\ns_load_dwordx8 s[32:39], s[0:1], 64\ns_load_dwordx4 s[40:43], s[0:1], 96")
    e(f"v_lshrrev_b32 v3, 6, v0\nv_and_b32 v1, 63, v0\nv_readfirstlane_b32 s{sW}, v3\nv_lshlrev_b32 v2, 4, v1")
    e(f"s_and_b32 s{sX}, s2, 7\ns_lshr_b32 s{sT}, s2, 3\ns_mul_i32 s{sT+1}, s{sT}, 37\ns_lshr_b32 s{sT+1}, s{sT+1}, 8")
    e(f"s_mul_i32 s{sT+2}, s{sT+1}, 7\ns_sub_u32 s{sDT}, s{sT}, s{sT+2}\ns_and_b32 s{sPP}, s{sX}, 1\ns_lshr_b32 s{sGRP}, s{sX}, 1\ns_lshl_b32 s{sGRP}, s{sGRP}, 2\ns_add_u32 s{sGRP}, s{sGRP}, s{sT+1}")
    e(f"s_mul_i32 s{sJ}, s{sPP}, 7\ns_add_u32 s{sJ}, s{sJ}, s{sDT}\ns_mov_b32 s{sONES}, 0x3f803f80")
    e("s_waitcnt lgkmcnt(0)")
    e.stamp('start')
    e(f"s_lshl_b32 s{sT}, s2, 2\ns_load_dword s{sLDT}, {sp(pLDT)}, s{sT}\ns_load_dword s{sDSK}, {sp(pDSK)}, s{sT}")
    e(f"v_lshlrev_b32 v4, 1, v0\ns_lshl_b32 s{sT}, s2, 10\nv_add_u32 v4, s{sT}, v4")
    for c in range(2):
        for k, p in enumerate([pLOGA, pAIM, pCRE, pCIM]):
            e(f"global_load_ushort v{64+4*c+k}, v4, {sp(p)} offset:{512*c} @@kp")
    nopack = e.lab('nopack'); packld = e.lab('packld'); iswd = e.lab('iswd'); cfg = e.lab('cfg')
    sSRC = 56; sSTR, sFLAG, sA, sB, sROW0, sD2, sSH, sDST = 58, 59, 60, 61, 62, 63, sT+4, sT+5
    e(f"s_cmp_ge_u32 s2, 168\ns_cbranch_scc1 {nopack}")
    e(f"s_cmp_ge_u32 s2, 112\ns_cbranch_scc1 {iswd}")
    e(f"s_bitcmp1_b32 s2, 0\ns_cselect_b32 s{sSRC}, s{pWU}, s{pWG}\ns_cselect_b32 s{sSRC+1}, s{pWU+1}, s{pWG+1}")
    e(f"s_lshr_b32 s{sT}, s2, 1\ns_lshl_b32 s{sB}, s{sT}, 6\ns_mov_b32 s{sA}, 0\ns_mov_b32 s{sSTR}, 3584\ns_mov_b32 s{sFLAG}, {hex(f2u(1.0/448))}\ns_mov_b32 s{sROW0}, 0\ns_mov_b32 s{sD2}, 256\ns_mov_b32 s{sSH}, 9")
    e(f"s_mul_i32 s{sDST}, s{sT}, 57344\ns_and_b32 s{sT}, s2, 1\ns_lshl_b32 s{sT}, s{sT}, 10\ns_add_u32 s{sDST}, s{sDST}, s{sT}")
    e(f"s_branch {cfg}")
    e(f"{iswd}:")
    e(f"s_mov_b32 s{sSRC}, s{pWD}\ns_mov_b32 s{sSRC+1}, s{pWD+1}")
    e(f"s_sub_u32 s{sT}, s2, 112\ns_lshr_b32 s{sT+1}, s{sT}, 3\ns_lshl_b32 s{sB}, s{sT+1}, 7\ns_bfe_u32 s{sT+2}, s{sT}, 0x10002\ns_and_b32 s{sT+3}, s{sT}, 3")
    e(f"s_lshl_b32 s{sA}, s{sT+2}, 6\ns_lshl_b32 s{sT}, s{sT+3}, 5\ns_add_u32 s{sA}, s{sA}, s{sT}\ns_mul_i32 s{sROW0}, s{sT+3}, 448")
    e(f"s_mul_i32 s{sDST}, s{sT+1}, 229376\ns_mul_i32 s{sT}, s{sT+3}, 57344\ns_add_u32 s{sDST}, s{sDST}, s{sT}\ns_lshl_b32 s{sT}, s{sT+2}, 10\ns_add_u32 s{sDST}, s{sDST}, s{sT}\ns_add_u32 s{sDST}, s{sDST}, {WS_WD}")
    e(f"s_mov_b32 s{sSTR}, 896\ns_mov_b32 s{sFLAG}, 0\ns_mov_b32 s{sD2}, 512\ns_mov_b32 s{sSH}, 8")
    e(f"{cfg}:")
    e(f"s_mul_i32 s{sT}, s{sW}, 112\ns_add_u32 s{sT}, s{sT}, s{sROW0}")
    e(f"v_lshrrev_b32 v5, 2, v1\nv_add_u32 v5, s{sT}, v5\nv_mul_lo_u32 v5, v5, s{sSTR}\nv_and_b32 v6, 3, v1\nv_lshlrev_b32 v6, 4, v6\nv_add_u32 v6, s{sA}, v6\nv_and_b32 v6, 127, v6\nv_add3_u32 v5, v5, v6, s{sB}")
    e(f"s_lshl_b32 s{sT}, s{sSTR}, 4\ns_mul_i32 s{sT+1}, s{sW}, 7168\ns_add_u32 s{sT+1}, s{sT+1}, {L_PK}")
    for i in range(7):
        e(f"s_add_u32 m0, s{sT+1}, {1024*i}")
        e(f"global_load_lds_dwordx4 v5, {sp(sSRC)} @@pk")
        if i < 6: e(f"v_add_u32 v5, s{sT}, v5")
    e(f"v_lshrrev_b32 v6, 5, v1\nv_lshlrev_b32 v6, s{sSH}, v6")
    e(f"v_and_b32 v7, 15, v1\nv_lshrrev_b32 v7, 2, v7\nv_lshlrev_b32 v7, 6, v7\nv_add_u32 v6, v6, v7")
    e(f"v_bfe_u32 v7, v1, 4, 1\nv_lshlrev_b32 v7, 5, v7\nv_add_u32 v6, v6, v7\nv_and_b32 v7, 3, v1\nv_lshlrev_b32 v7, 3, v7")
    e(f"v_add3_u32 v7, v6, v7, s{sT+1}\nv_add_u32 v8, s{sD2}, v7")
    e(f"s_branch {packld}")
    e(f"{nopack}:")
    e(f"s_sub_u32 s{sT}, s2, 168\ns_lshl_b32 s{sT+1}, s{sT}, 2\ns_add_u32 s{sT+1}, s{sT+1}, s{sW}\ns_lshl_b32 s{sT+1}, s{sT+1}, 1")
    e(f"v_lshrrev_b32 v5, 3, v1\nv_mul_u32_u24 v5, 896, v5\nv_and_b32 v6, 7, v1\nv_lshlrev_b32 v6, 4, v6\nv_add_u32 v5, v5, v6")
    e(f"s_lshl_b32 s{sC+6}, s{sW}, 13")
    for k in range(2):
        e(f"s_add_u32 s{sT+2}, s{sT+1}, {k}\ns_mul_i32 s{sT+3}, s{sT+2}, 9363\ns_lshr_b32 s{sT+3}, s{sT+3}, 16\ns_mul_i32 s{sC}, s{sT+3}, 7\ns_sub_u32 s{sC}, s{sT+2}, s{sC}")
        e(f"s_mul_i32 s{sC+1}, s{sT+3}, {32*896}\ns_lshl_b32 s{sC+2}, s{sC}, 7\ns_add_u32 s{sC+1}, s{sC+1}, s{sC+2}\nv_add_u32 v6, s{sC+1}, v5")
        e(f"s_mul_i32 s{sC+3+k}, s{sT+3}, {XT}\ns_lshl_b32 s{sC+2}, s{sC}, 12\ns_add_u32 s{sC+3+k}, s{sC+3+k}, s{sC+2}\ns_add_u32 s{sC+3+k}, s{sC+3+k}, {WS_X[0]}")
        for i in range(4):
            e(f"s_add_u32 m0, s{sC+6}, {4096*k + 1024*i}")
            e(f"global_load_lds_dwordx4 v6, {sp(pAU)} @@pk")
            if i < 3: e(f"v_add_u32 v6, {8*896}, v6")
    e(f"s_lshl_b32 s{sT}, s{sT}, 12\ns_add_u32 s{sT}, s{sT}, {WS_Z}\nv_lshlrev_b32 v5, 4, v0\nv_add_u32 v5, s{sT}, v5")
    e("v_mov_b32 v84, 0\nv_mov_b32 v85, 0\nv_mov_b32 v86, 0\nv_mov_b32 v87, 0")
    e(f"global_store_dwordx4 v5, v[84:87], {sp(pWS)} sc1")
    e(f"v_lshrrev_b32 v7, 4, v1\nv_lshlrev_b32 v7, 10, v7\nv_bfe_u32 v6, v1, 2, 2\nv_lshlrev_b32 v6, 7, v6\nv_and_b32 v8, 3, v1\nv_lshlrev_b32 v8, 3, v8\nv_add3_u32 v7, v7, v6, v8\nv_add_u32 v7, s{sC+6}, v7")
    e(f"v_and_b32 v8, 15, v1\nv_lshlrev_b32 v8, 6, v8\nv_lshrrev_b32 v6, 4, v1\nv_lshlrev_b32 v6, 4, v6\nv_add_u32 v8, v8, v6")
    e(f"{packld}:")
    nost = e.lab('nostat')
    e(f"s_lshl_b32 s{sT}, s2, 3\ns_cmp_eq_u32 s{sW}, 0\ns_cbranch_scc1 {nost}_a")
    e(f"s_cmp_lg_u32 s{sW}, 1\ns_cbranch_scc1 {nost}_b\ns_cmp_ge_u32 s2, 32\ns_cbranch_scc1 {nost}_b\ns_add_u32 s{sT}, s{sT}, 1792")
    e(f"{nost}_a:")
    e(f"v_lshrrev_b32 v9, 3, v1\nv_add_u32 v9, s{sT}, v9\nv_mul_u32_u24 v88, 896, v9\nv_and_b32 v89, 7, v1\nv_lshlrev_b32 v89, 4, v89\nv_add_u32 v88, v88, v89")
    e("CONDB")
    for c in range(7):
        e(f"global_load_dwordx4 {vr(128+4*c,4)}, v88, {sp(pAU)} offset:{128*c} @@srow")
    e("CONDE")
    e(f"s_mov_b32 s{sT+3}, 1\ns_branch {nost}_c")
    e(f"{nost}_b:\ns_mov_b32 s{sT+3}, 0\n{nost}_c:")
    e(f"s_mov_b32 s{sLAYER}, s{sT+3}")
    consts(e)
    e(f"s_cmp_eq_u32 s{sLAYER}, 0\ns_cbranch_scc1 {nost}")
    e("s_waitcnt vmcnt(0)")
    e("v_mov_b32 v90, 0\nv_mov_b32 v91, 0")
    for k in range(28): e(f"v_dot2_f32_bf16 v90, v{128+k}, s{sONES}, v90")
    for k in range(28): e(f"v_dot2_f32_bf16 v91, v{128+k}, v{128+k}, v91")
    for dpp in ["quad_perm:[1,0,3,2]", "quad_perm:[2,3,0,1]", "row_half_mirror"]:
        e(f"v_add_f32_dpp v90, v90, v90 {dpp} row_mask:0xf bank_mask:0xf\nv_add_f32_dpp v91, v91, v91 {dpp} row_mask:0xf bank_mask:0xf")
    e(f"v_lshlrev_b32 v9, 3, v9\nv_add_u32 v9, {WS_ST1}, v9")
    e("s_mov_b32 exec_lo, 0x01010101\ns_mov_b32 exec_hi, 0x01010101")
    e(f"CONDB\nglobal_store_dwordx2 v9, v[90:91], {sp(pWS)} sc1\nCONDE")
    e("s_mov_b64 exec, -1")
    e(f"{nost}:")
    e("s_waitcnt vmcnt(0)")
    e.stamp('p0_ld')
    nop2 = e.lab('nopack2'); pkdone = e.lab('pkdone')
    e(f"s_cmp_ge_u32 s2, 168\ns_cbranch_scc1 {nop2}")
    for i in range(7):
        e(f"ds_read_b64_tr_b16 {vr(128+4*i,2)}, v7 offset:{1024*i}\nds_read_b64_tr_b16 {vr(130+4*i,2)}, v8 offset:{1024*i}")
    e("v_mov_b32 v90, 0\ns_waitcnt lgkmcnt(0)")
    for k in range(28): e(f"v_dot2_f32_bf16 v90, v{128+k}, s{sONES}, v90")
    e("s_nop 2\nv_mov_b32 v91, v90\ns_nop 1\nv_permlane32_swap_b32 v90, v91\ns_nop 1\nv_add_f32 v90, v90, v91")
    e(f"v_and_b32 v92, 31, v1\nv_lshlrev_b32 v92, 2, v92\ns_lshl_b32 s{sT}, s{sW}, 7\nv_add_u32 v93, s{sT}, v92")
    e(f"ds_write_b32 v93, v90 offset:{L_PS}\ns_waitcnt lgkmcnt(0)\ns_barrier")
    for w in range(4): e(f"ds_read_b32 v{94+w}, v92 offset:{L_PS+128*w}")
    e(f"s_mul_i32 s{sT}, s{sW}, {7*2048}\ns_add_u32 s{sT}, s{sT}, s{sDST}\nv_add_u32 v5, s{sT}, v2")
    e("s_waitcnt lgkmcnt(0)")
    e(f"v_add_f32 v94, v94, v95\nv_add_f32 v96, v96, v97\nv_add_f32 v94, v94, v96\nv_mul_f32 v94, s{sFLAG}, v94")
    for i in range(7):
        for r in range(4):
            v = 128 + 4*i + r
            e(f"v_lshlrev_b32 v95, 16, v{v}\nv_and_b32 v96, 0xffff0000, v{v}\nv_sub_f32 v95, v95, v94\nv_sub_f32 v96, v96, v94\nv_cvt_pk_bf16_f32 v{v}, v95, v96")
        e(f"global_store_dwordx4 v5, {vr(128+4*i,4)}, {sp(pWS)} offset:{(i%2)*2048} sc1")
        if i % 2 == 1: e("v_add_u32 v5, 4096, v5")
    e(f"s_branch {pkdone}")
    e(f"{nop2}:")
    e("s_barrier")
    for k in range(2):
        for s in range(4):
            r = 128 + 16*k + 4*s
            e(f"ds_read_b64_tr_b16 {vr(r,2)}, v7 offset:{4096*k + 32*s}\nds_read_b64_tr_b16 {vr(r+2,2)}, v7 offset:{4096*k + 32*s + 512}")
    for k in range(2):
        e(f"v_add_u32 v{5+k}, s{sC+3+k}, v8")
    e("s_waitcnt lgkmcnt(0)")
    for k in range(2):
        for s in range(4):
            e(f"global_store_dwordx4 v{5+k}, {vr(128+16*k+4*s,4)}, {sp(pWS)} offset:{1024*s} sc1")
    e(f"{pkdone}:")
    e.stamp('p0_pk')
    kgen1(e)
    e.stamp('kgen1')
    e("s_waitcnt vmcnt(0) lgkmcnt(0)\ns_barrier")
    sk = e.lab('s1sig')
    e(f"s_cmp_lg_u32 s{sW}, 0\ns_cbranch_scc1 {sk}")
    e(f"s_mov_b64 exec, 1\ns_and_b32 s{sT}, s2, 3\ns_lshl_b32 s{sT}, s{sT}, 6\nv_mov_b32 v4, s{sT}")
    e(f"CONDB\nglobal_atomic_add v4, v{vONE}, {sp(pDBG)} sc1\nCONDE\ns_mov_b64 exec, -1")
    e(f"{sk}:")
    kgen2(e)

def consts(e):
    e(f"v_mov_b32 v{vONE}, 1")
    e(f"v_lshrrev_b32 v4, 3, v0\nv_mul_u32_u24 v4, {XT}, v4\nv_and_b32 v5x, 7, v0".replace('v5x', 'v3') + f"\nv_lshlrev_b32 v3, 3, v3\ns_lshl_b32 s{sT}, s2, 7\nv_add3_u32 v{vXA}, v4, v3, s{sT}")
    e(f"v_lshlrev_b32 v{vSTA}, 5, v0")
    e(f"v_lshlrev_b32 v{vSIG}, 10, v1\ns_lshl_b32 s{sT}, s{sX}, 7\nv_add_u32 v{vSIG}, s{sT}, v{vSIG}")
    e(f"v_and_b32 v{vPOL}, 7, v1\nv_lshlrev_b32 v{vPOL}, 7, v{vPOL}\ns_lshl_b32 s{sT}, s{sX}, 10\nv_add_u32 v{vPOL}, s{sT}, v{vPOL}")
    e(f"v_lshlrev_b32 v{vUW}, 3, v0\nv_add_u32 v{vUW}, {L_U + 480}, v{vUW}")
    e(f"v_lshlrev_b32 v{vBW}, 4, v0\nv_add_u32 v{vBW}, {L_BASE}, v{vBW}")
    e("v_and_b32 v4, 15, v1\nv_lshrrev_b32 v3, 4, v1")
    e(f"s_lshr_b32 s{sT}, s{sW}, 1\ns_and_b32 s{sT+1}, s{sW}, 1")
    e(f"v_and_b32 v{vKA+1}, 1, v3\nv_lshlrev_b32 v{vKA+1}, 4, v{vKA+1}\nv_lshrrev_b32 v{vKA+2}, 1, v3\nv_lshlrev_b32 v{vKA+2}, 5, v{vKA+2}\nv_sub_u32 v{vKA+3}, v{vKA+1}, v{vKA+2}")
    e(f"s_lshl_b32 s{sT+3}, s{sT+1}, 8")
    e(f"s_mul_i32 s{sT+2}, s{sT}, {UC}\ns_sub_u32 s{sT+2}, s{sT+2}, s{sT+3}\ns_add_u32 s{sT+2}, s{sT+2}, {L_U + 480 - 192}")
    e(f"v_lshlrev_b32 v{vUB}, 5, v4\nv_add3_u32 v{vUB}, v{vUB}, v{vKA+3}, s{sT+2}")
    e(f"s_mul_i32 s{sT+2}, s{sT}, {KPC}\ns_sub_u32 s{sT+2}, s{sT+2}, s{sT+3}\ns_add_u32 s{sT+2}, s{sT+2}, {L_KP + 4094 - 192 - 3584}")
    e(f"v_lshlrev_b32 v{vKA+1}, 1, v4\nv_sub_u32 v{vKA+1}, v{vKA+3}, v{vKA+1}\nv_add_u32 v{vKA+1}, s{sT+2}, v{vKA+1}")
    e(f"v_and_b32 v{vKA+2}, 1, v4\nv_mov_b32 v{vKA+3}, 4158\nv_cmp_eq_u32 vcc, 0, v{vKA+2}\nv_cndmask_b32 v{vKA+2}, 0, v{vKA+3}, vcc\nv_add_u32 v{vKA}, v{vKA+1}, v{vKA+2}")
    for k in range(1, 4): e(f"v_add_u32 v{vKA+k}, {1024*k}, v{vKA}")
    e(f"s_lshl_b32 s{sT+2}, s{sW}, 12\ns_add_u32 s{sT+2}, s{sT+2}, {L_YA}\nv_add_u32 v{vYW}, s{sT+2}, v2")
    e(f"s_lshl_b32 s{sT+2}, s{sT}, 13\ns_lshl_b32 s{sT+3}, s{sT+1}, 11\ns_add_u32 s{sT+2}, s{sT+2}, s{sT+3}\ns_add_u32 s{sT+3}, s{sT+2}, {L_YA}\nv_add_u32 v{vYR}, s{sT+3}, v2")
    e(f"s_add_u32 s{sT+2}, s{sT+2}, {L_BASE}\nv_lshlrev_b32 v{vBR}, 6, v4\nv_lshlrev_b32 v{vYST}, 4, v3\nv_add3_u32 v{vBR}, v{vBR}, v{vYST}, s{sT+2}")
    e(f"v_lshrrev_b32 v{vYST}, 1, v4\nv_mul_u32_u24 v{vYST}, {XT}, v{vYST}\nv_and_b32 v4, 1, v4\nv_lshlrev_b32 v4, 5, v4\nv_lshlrev_b32 v3, 3, v3\nv_add3_u32 v{vYST}, v{vYST}, v4, v3")
    e(f"s_mul_i32 s{sT+2}, s{sT+1}, {16*XT}\ns_lshl_b32 s{sT+3}, s2, 7\ns_add_u32 s{sT+2}, s{sT+2}, s{sT+3}\ns_lshl_b32 s{sT+3}, s{sT}, 6\ns_add_u32 s{sT+2}, s{sT+2}, s{sT+3}\nv_add_u32 v{vYST}, s{sT+2}, v{vYST}")
    e(f"v_bfe_u32 v3, v1, 2, 2\nv_lshlrev_b32 v3, 6, v3\nv_bfe_u32 v4, v1, 4, 1\nv_lshlrev_b32 v4, 5, v4\nv_add_u32 v3, v3, v4\nv_and_b32 v4, 3, v1\nv_lshlrev_b32 v4, 3, v4\nv_add_u32 v3, v3, v4")
    e(f"v_lshrrev_b32 v4, 5, v1\nv_lshlrev_b32 v{vTR}, 9, v4\nv_add3_u32 v{vTR}, v{vTR}, v3, {L_XT}".replace(f"v3, {L_XT}", "v3, 0") + f"\nv_add_u32 v{vTR}, {L_XT}, v{vTR}")
    e(f"v_lshlrev_b32 v{vRES}, 8, v4\nv_add_u32 v{vRES}, v{vRES}, v3\ns_mul_i32 s{sT+2}, s{sPP}, {XT}\ns_lshl_b32 s{sT+3}, s{sDT}, 12\ns_add_u32 s{sT+2}, s{sT+2}, s{sT+3}\ns_lshl_b32 s{sT+3}, s{sW}, 10\ns_add_u32 s{sT+2}, s{sT+2}, s{sT+3}\ns_add_u32 s{sT+2}, s{sT+2}, {L_XT}\nv_add_u32 v{vRES}, s{sT+2}, v{vRES}")
    e(f"s_mul_i32 s{sT+2}, s{sW}, 7168\nv_add_u32 v{vTD}, s{sT+2}, v2")
    e(f"s_lshl_b32 s{sT+2}, s{sJ}, 2\ns_add_u32 s{sT+2}, s{sT+2}, s{sW}\ns_lshl_b32 s{sT+2}, s{sT+2}, 11\nv_add_u32 v{vHS}, s{sT+2}, v2")
    e(f"v_and_b32 v{vL8}, 31, v1\nv_lshlrev_b32 v{vL8}, 3, v{vL8}")
    e(f"s_mul_i32 s{sT+2}, s{sW}, 28672\nv_add_u32 v{vHL}, s{sT+2}, v2")
    e(f"s_mul_i32 s{sT+2}, s{sW}, 6144\ns_add_u32 s{sT+2}, s{sT+2}, {L_XT}\nv_add_u32 v{vRR}, s{sT+2}, v2")
    e(f"v_and_b32 v{vOTW}, 7, v1\nv_lshlrev_b32 v{vOTW}, 5, v{vOTW}\nv_bfe_u32 v3, v1, 3, 2\nv_mul_u32_u24 v3, 384, v3\nv_lshlrev_b32 v4, 3, v4\nv_add3_u32 v{vOTW}, v{vOTW}, v3, v4")
    e(f"s_mul_i32 s{sT+2}, s{sW}, 1536\ns_add_u32 s{sT+2}, s{sT+2}, {L_OT}\nv_add_u32 v{vOTW}, s{sT+2}, v{vOTW}")
    e(f"v_bfe_u32 v{vOTR}, v1, 2, 2\nv_lshlrev_b32 v{vOTR}, 5, v{vOTR}\nv_lshrrev_b32 v3, 4, v1\nv_mul_u32_u24 v3, 384, v3\nv_and_b32 v4, 3, v1\nv_lshlrev_b32 v4, 3, v4\nv_add3_u32 v{vOTR}, v{vOTR}, v3, v4\nv_add_u32 v{vOTR}, s{sT+2}, v{vOTR}")
    e(f"s_lshl_b32 s{sT+3}, s{sPP}, 4\ns_add_u32 s{sT+3}, s{sT+3}, s{sGRP}")
    e(f"s_mul_i32 s{sT+2}, s{sT+3}, {XT}\ns_lshl_b32 s{sT+4}, s{sDT}, 12\ns_add_u32 s{sT+2}, s{sT+2}, s{sT+4}\ns_lshl_b32 s{sT+4}, s{sW}, 10\ns_add_u32 s{sT+2}, s{sT+2}, s{sT+4}")
    e(f"v_and_b32 v{vXST}, 15, v1\nv_lshlrev_b32 v{vXST}, 6, v{vXST}\nv_lshrrev_b32 v3, 4, v1\nv_lshlrev_b32 v3, 4, v3\nv_add3_u32 v{vXST}, v{vXST}, v3, s{sT+2}")
    e(f"v_lshrrev_b32 v3, 5, v1\nv_lshlrev_b32 v4, 2, v3\ns_lshl_b32 s{sT+2}, s{sT+3}, 8\ns_add_u32 s{sT+2}, s{sT+2}, {WS_ST3}\nv_add3_u32 v{vSTAT}, v{vL8}, v4, s{sT+2}")
    e(f"v_and_b32 v{vOST}, 31, v1\ns_lshl_b32 s{sT+2}, s{sT+3}, 5\nv_add_u32 v{vOST}, s{sT+2}, v{vOST}\nv_mul_u32_u24 v{vOST}, 896, v{vOST}\nv_lshlrev_b32 v3, 4, v3\ns_lshl_b32 s{sT+2}, s{sDT}, 7\ns_lshl_b32 s{sT+4}, s{sW}, 5\ns_add_u32 s{sT+2}, s{sT+2}, s{sT+4}\nv_add3_u32 v{vOST}, v{vOST}, v3, s{sT+2}")

def kgen1(e):
    lp = e.lab('kg1')
    e("s_waitcnt lgkmcnt(0)")
    e(f"s_lshl_b32 s{sT}, s{sDSK}, 16\ns_and_b32 s{sT+1}, s{sDSK}, 0xffff0000\nv_mov_b32 v{vDS}, s{sT}\nv_mov_b32 v{vDS1}, s{sT+1}")
    e(f"s_lshl_b32 s{sT+4}, s{sLDT}, 16")
    e(f"s_lshl_b32 s{sT}, s{sW}, 8\ns_add_u32 s{sT+5}, s{sT}, {L_BS[0]}\ns_mov_b32 s{sT+3}, 0")
    e(f"{lp}:")
    lar, aim, cr, ci = 64, 65, 66, 67
    dt = 72
    e(f"s_mov_b32 m0, s{sT+5}")
    e(f"v_mov_b32 v{dt}, s{sT+4}\nv_mul_f32 v{dt}, {hex(LOG2E)}, v{dt}\nv_exp_f32 v{dt}, v{dt}")
    for r in (lar, aim, cr, ci): e(f"v_lshlrev_b32 v{r}, 16, v{r}")
    e(f"v_mul_f32 v{lar}, {hex(LOG2E)}, v{lar}\nv_exp_f32 v{lar}, v{lar}")
    e(f"v_cvt_pk_bf16_f32 v{dt}, v{dt}, v{dt}\nv_lshlrev_b32 v{dt}, 16, v{dt}")
    e(f"v_cvt_pk_bf16_f32 v{lar}, v{lar}, v{lar}\nv_lshlrev_b32 v{lar}, 16, v{lar}")
    e(f"v_mul_f32 v{lar}, v{lar}, v{dt}\nv_mul_f32 v{aim}, v{aim}, v{dt}\nv_mul_f32 v{cr}, v{cr}, v{dt}\nv_mul_f32 v{ci}, v{ci}, v{dt}")
    e(f"v_mul_f32 v{lar}, {hex(f2u(-1.4426950408889634))}, v{lar}\nv_mul_f32 v{aim}, {hex(INV2PI)}, v{aim}")
    E1, E8, E256, E512, E1024 = 74, 76, 78, 80, 82
    lst = ((E1, 1), (E8, 8), (E256, 256), (E512, 512), (E1024, 1024))
    for k, (reg, p) in enumerate(lst):
        if p == 1: e(f"v_mov_b32 v{84+k}, v{lar}\nv_fract_f32 v{90+k}, v{aim}")
        else: e(f"v_mul_f32 v{84+k}, {hex(f2u(float(p)))}, v{lar}\nv_mul_f32 v{90+k}, {hex(f2u(float(p)))}, v{aim}")
    for k in range(1, 5): e(f"v_fract_f32 v{90+k}, v{90+k}")
    for k in range(5): e(f"v_exp_f32 v{84+k}, v{84+k}")
    for k, (reg, p) in enumerate(lst): e(f"v_cos_f32 v{reg}, v{90+k}\nv_sin_f32 v{reg+1}, v{90+k}")
    for k, (reg, p) in enumerate(lst): e(f"v_mul_f32 v{reg}, v{reg}, v{84+k}\nv_mul_f32 v{reg+1}, v{reg+1}, v{84+k}")
    T = 96
    def wr(row_off, reg, neg):
        return [f"v_cvt_pk_bf16_f32 v{104 + (wr.k % 4)}, v{reg}, {'-' if neg else ''}v{reg+1}", f"ds_write_addtid_b32 v{104 + (wr.k % 4)} offset:{row_off}"]
    wr.k = 0
    def w(row_off, reg, neg=False):
        e(wr(row_off, reg, neg)); wr.k += 1
    E16, E24, E32 = 108, 110, 112
    e2, e3, e4, e5, e6, e7 = 114, 116, 118, 120, 122, 124
    B = [128, 130, 132, 134]
    e(f"v_add_f32 v{B[0]}, v{cr}, v{cr}\nv_add_f32 v{B[0]+1}, v{ci}, v{ci}")
    e(cmul_group([(E16, E8, E8), (e2, E1, E1), (B[1], B[0], E8)], T))
    e("v_mov_b32 v107, 0x3f80"); e(f"ds_write_addtid_b32 v107 offset:{L_AS_OFF}")
    w(L_AS_OFF + 1*ROWB, E1); w(0, B[0], True)
    e(cmul_group([(E24, E16, E8), (E32, E16, E16), (e3, e2, E1), (e4, e2, e2)], T))
    w(L_AS_OFF + 2*ROWB, e2); w(1*ROWB, B[1], True)
    E768 = 126
    e(cmul_group([(B[2], B[0], E16), (B[3], B[0], E24), (E768, E512, E256), (e5, e4, E1)], T))
    w(L_AS_OFF + 3*ROWB, e3); w(L_AS_OFF + 4*ROWB, e4); w(L_AS_OFF + 8*ROWB, E256); w(L_AS_OFF + 12*ROWB, E512); w(L_AS_OFF + 16*ROWB, E1024)
    X = [136, 138, 140, 142]
    e(cmul_group([(e6, e4, e2), (e7, e4, e3), (X[0], E256, e2), (X[1], E256, e4)], T))
    w(2*ROWB, B[2], True); w(3*ROWB, B[3], True); w(L_AS_OFF + 5*ROWB, e5); w(L_AS_OFF + 14*ROWB, E768)
    Y = [144, 146, 148, 150]
    e(cmul_group([(Y[0], E256, e6), (Y[1], E512, e4), (Y[2], E768, e4), (Y[3], E1024, E256)], T))
    w(L_AS_OFF + 6*ROWB, e6); w(L_AS_OFF + 7*ROWB, e7); w(L_AS_OFF + 9*ROWB, X[0]); w(L_AS_OFF + 10*ROWB, X[1])
    e(cmul_group([(X[0], E1024, E512), (X[1], E1024, E768), (X[2], E1024, E1024)], T))
    w(L_AS_OFF + 11*ROWB, Y[0]); w(L_AS_OFF + 13*ROWB, Y[1]); w(L_AS_OFF + 15*ROWB, Y[2]); w(L_AS_OFF + 17*ROWB, Y[3])
    B2 = [152, 154, 156, 158]
    cur, nxt = B, B2
    first = True
    for blk in range(1, 8):
        e(cmul_group([(nxt[k], cur[k], E32) for k in range(4)], T))
        if first:
            w(L_AS_OFF + 18*ROWB, X[0]); w(L_AS_OFF + 19*ROWB, X[1]); w(L_AS_OFF + 20*ROWB, X[2]); first = False
        else:
            for k in range(4): w((4*(blk-1) + k)*ROWB, cur[k], True)
        cur, nxt = nxt, cur
    for k in range(4): w((28 + k)*ROWB, cur[k], True)
    for k in range(4): e(f"v_mov_b32 v{64+k}, v{68+k}")
    e(f"s_and_b32 s{sT+4}, s{sLDT}, 0xffff0000\ns_add_u32 s{sT+5}, s{sT+5}, {L_BS[1]-L_BS[0]}\ns_add_u32 s{sT+3}, s{sT+3}, 1\ns_cmp_lt_u32 s{sT+3}, 2\ns_cbranch_scc1 {lp}")

def kgen2(e):
    e(f"s_lshr_b32 s{sT}, s{sW}, 1\ns_mul_i32 s{sT}, s{sT}, 55120\ns_and_b32 s{sT+1}, s{sW}, 1\ns_lshl_b32 s{sT+2}, s{sT+1}, 9\ns_add_u32 s{sT}, s{sT}, s{sT+2}\ns_add_u32 s{sT}, s{sT}, {L_XT}")
    e(f"v_and_b32 v4, 31, v1\nv_mul_u32_u24 v4, {ROWB}, v4\nv_lshrrev_b32 v5, 5, v1\nv_lshlrev_b32 v5, 4, v5\nv_add3_u32 v4, v4, v5, s{sT}")
    for ks in range(16):
        e(f"ds_read_b128 {vr(96+8*ks,4)}, v4 offset:{32*ks} @@kb{ks}\nds_read_b128 {vr(100+8*ks,4)}, v4 offset:{L_AS_OFF+32*ks} @@kb{ks}")
    e("v_and_b32 v82, 31, v1")
    e("v_mov_b32 v80, v82")
    e("v_lshlrev_b32 v83, 1, v82\nv_add_u32 v83, 240, v83\nv_cmp_le_u32 vcc, 8, v82\nv_cndmask_b32 v80, v80, v83, vcc")
    e("v_and_b32 v83, 1, v82\nv_lshlrev_b32 v83, 2, v83\nv_bfe_u32 v84, v82, 1, 1\nv_lshlrev_b32 v84, 8, v84\nv_add3_u32 v83, v83, v84, 0\nv_add_u32 v83, 512, v83")
    e("v_cmp_le_u32 vcc, 12, v82\nv_cndmask_b32 v80, v80, v83, vcc")
    e("v_lshlrev_b32 v83, 8, v82\nv_subrev_u32 v83, 3072, v83\nv_cmp_le_u32 vcc, 16, v82\nv_cndmask_b32 v80, v80, v83, vcc")
    e("v_cvt_f32_u32 v80, v80")
    e(f"v_mov_b32 v81, {hex(f2u(8.0))}\nv_mov_b32 v83, {hex(f2u(16.0))}\nv_cmp_le_u32 vcc, 20, v82\nv_cndmask_b32 v81, v81, v83, vcc")
    e(f"v_lshrrev_b32 v83, 5, v1\nv_lshlrev_b32 v83, 2, v83\ns_lshl_b32 s{sT+2}, s{sT+1}, 4\nv_add_u32 v83, s{sT+2}, v83\nv_cvt_f32_u32 v83, v83")
    e("v_fma_f32 v84, v81, v83, v80")
    e("v_add_f32 v85, v84, v81\nv_add_f32 v86, v85, v81\nv_add_f32 v87, v86, v81")
    e(f"s_mov_b32 s{sT+2}, {hex(f2u(8.0))}")
    for k in range(4): e(f"v_fma_f32 v{88+k}, v81, s{sT+2}, v{84+k}")
    e(f"s_mov_b32 s{sT+2}, {hex(f2u(2064.0))}")
    for k in range(8): e(f"v_med3_f32 v{84+k}, v{84+k}, 0.5, s{sT+2}")
    for k in range(4): e(f"v_cvt_pk_bf16_f32 v{84+2*k}, v{84+2*k}, v{85+2*k}")
    for k in range(4): e(f"v_lshrrev_b32 v{85+2*k}, 15, v{84+2*k}\nv_lshlrev_b16 v{84+2*k}, 1, v{84+2*k}")
    e(f"s_lshr_b32 s{sT}, s{sW}, 1\ns_lshl_b32 s{sT}, s{sT}, 12\ns_add_u32 s{sT}, s{sT}, {L_TBL_ADD[0]}")
    for k in range(8): e(f"v_add_u32 v{84+k}, s{sT}, v{84+k}")
    for ks in range(16):
        e(f"WAITLG kb{ks}")
        e(f"v_mfma_f32_32x32x16_bf16 v[64:79], {vr(96+8*ks,4)}, {vr(100+8*ks,4)}, {'0' if ks==0 else 'v[64:79]'}")
    snd = e.lab('snd1'); snd2 = e.lab('snd2')
    e(f"s_xor_b32 s{sT+2}, s{sW}, 1\ns_lshl_b32 s{sT+2}, s{sT+2}, 11\nv_add_u32 v4, s{sT+2}, v2\ns_lshl_b32 s{sT+2}, s{sW}, 11\nv_add_u32 v5, s{sT+2}, v2")
    e(f"s_cmp_eq_u32 s{sT+1}, 0\ns_cbranch_scc0 {snd}")
    e(f"CONDB\nds_write_b128 v4, v[72:75] offset:{L_KX}\nds_write_b128 v4, v[76:79] offset:{L_KX+1024}\nCONDE")
    e(f"s_branch {snd2}")
    e(f"{snd}:")
    e(f"CONDB\nds_write_b128 v4, v[64:67] offset:{L_KX}\nds_write_b128 v4, v[68:71] offset:{L_KX+1024}\nCONDE")
    for r in range(8): e(f"v_mov_b32 v{64+r}, v{72+r}")
    e(f"{snd2}:")
    e("s_waitcnt lgkmcnt(0)\ns_barrier")
    e(f"ds_read_b128 v[72:75], v5 offset:{L_KX}\nds_read_b128 v[76:79], v5 offset:{L_KX+1024}")
    e(f"v_and_b32 v41, 3, v1\nv_lshlrev_b32 v41, 6, v41")
    e(f"global_load_dword v42, v41, {sp(pDBG)} sc1 @@s1p")
    e(f"v_mov_b32 v92, s{sT}\nv_mov_b32 v93, 0")
    e("s_waitcnt lgkmcnt(0)")
    for k in range(8): e(f"v_add_f32 v{64+k}, v{64+k}, v{72+k}")
    for k in range(4): e(f"v_cvt_pk_bf16_f32 v{64+k}, v{64+2*k}, v{65+2*k}")
    for k in range(4): e(f"ds_write_b16 v{84+2*k}, v{64+k}\nds_write_b16_d16_hi v{85+2*k}, v{64+k}")
    e(f"ds_write_b16 v92, v93 offset:{2*TB0}")
    e(f"v_lshrrev_b32 v4, 7, v0\nv_and_b32 v5, 127, v0\nv_lshlrev_b32 v6, 12, v4\nv_add_u32 v6, {L_TBL_ADD[0]}, v6")
    e(f"v_mul_u32_u24 v7, {KPC}, v4\nv_lshlrev_b32 v8, 4, v5\nv_add_u32 v7, v7, v8")
    e("v_lshlrev_b32 v8, 3, v5\nv_sub_u32 v8, 2047, v8\nv_cvt_f32_u32 v8, v8")
    for oc in range(2):
        F = 96 + 16*oc
        if oc == 1: e(f"v_subrev_f32 v8, {hex(f2u(1024.0))}, v8")
        e(f"v_mov_b32 v{F}, v8")
        for k in range(1, 10): e(f"v_add_f32 v{F+k}, -1.0, v{F+k-1}")
        if oc == 1:
            e("v_mov_b32 v77, 0x3e800000")
            for k in (7, 8, 9): e(f"v_fma_f32 v76, v{F+k}, v77, 0.5\nv_max_f32 v{F+k}, v{F+k}, v76")
            e(f"v_max_f32 v{F+9}, 0.5, v{F+9}")
        for k in range(5): e(f"v_cvt_pk_bf16_f32 v{F+2*k}, v{F+2*k}, v{F+2*k+1}")
        for k in range(5): e(f"v_lshrrev_b32 v{F+2*k+1}, 15, v{F+2*k}\nv_lshlrev_b16 v{F+2*k}, 1, v{F+2*k}")
        for k in range(9): e(f"v_add_u32 v{F+k}, v6, v{F+k}")
    e("s_waitcnt lgkmcnt(0)\ns_barrier")
    e.stamp('kg2a')
    for oc in range(2):
        F = 96 + 16*oc; V = 128 + 10*oc
        for k in range(9): e(f"ds_read_u16 v{V+k}, v{F+k}")
    chk = [f"v_cmp_gt_u32 vcc, 56, v42"]
    e("WAITVM s1p")
    e(slow_poll(e, chk, [f"global_load_dword v42, v41, {sp(pDBG)} sc1"], 's1'))
    e.stamp('s1chk')
    e(f"s_mov_b32 s{sLAYER}, 0\ns_mov_b32 s{sXIN}, {WS_X[0]}\ns_mov_b32 s{sXMID}, {WS_X[1]}\ns_mov_b32 s{sXOUT}, {WS_X[2]}\ns_mov_b32 s{sHOFF}, {WS_H[0]}\ns_mov_b32 s{sSTOFF}, {WS_ST1}")
    e(f"s_mov_b32 s{sFL}, {WS_FL[0]}\ns_mov_b32 s{sST2}, {WS_ST2[0]}\ns_mov_b32 s{sTGT}, 0")
    e(xa_loads())
    e("s_waitcnt lgkmcnt(0)")
    for oc in range(2):
        V = 128 + 10*oc; Ereg = 96 + 8*oc; O = Ereg + 4
        for k in range(4): e(f"v_lshl_or_b32 v{Ereg+k}, v{V+2*k+1}, 16, v{V+2*k}\nv_lshl_or_b32 v{O+k}, v{V+2*k+2}, 16, v{V+2*k+1}")
        e(f"ds_write_b128 v7, {vr(Ereg,4)} offset:{L_KP + 2048*oc}\nds_write_b128 v7, {vr(O,4)} offset:{L_KP + KPO + 2048*oc}")
    e(f"v_and_b32 v4, 1, v0\nv_lshlrev_b32 v4, 4, v4\nv_bfe_u32 v5, v0, 1, 1\nv_mul_u32_u24 v5, {KPO}, v5\nv_bfe_u32 v6, v0, 2, 1\nv_mul_u32_u24 v6, {KPC}, v6\nv_add3_u32 v4, v4, v5, v6")
    e("v_mov_b32 v64, 0\nv_mov_b32 v65, 0\nv_mov_b32 v66, 0\nv_mov_b32 v67, 0")
    e(f"ds_write_b128 v4, v[64:67] offset:{L_KP + 4096}")
    e(f"v_and_b32 v8, 31, v0\nv_min_u32 v8, 29, v8\nv_lshlrev_b32 v8, 4, v8\nv_bfe_u32 v9, v0, 5, 1\nv_mul_u32_u24 v9, {UC}, v9\nv_add_u32 v8, v8, v9")
    e(f"ds_write_b128 v8, v[64:67] offset:{L_U}")
    e("s_waitcnt lgkmcnt(0)\ns_barrier")
    e.stamp('kg2b')

vXR = 44
vSR = 48
vXB = 56
def xa_loads():
    return split(f"""v_add_u32 v4, s{sXIN}, v{vXA}
    v_add_u32 v5, s{sSTOFF}, v{vSTA}
    global_load_dwordx2 {vr(vXR,2)}, v4, {sp(pWS)} sc1 @@xa
    global_load_dwordx2 {vr(vXR+2,2)}, v4, {sp(pWS)} offset:64 sc1 @@xa
    global_load_dwordx4 {vr(vSR,4)}, v5, {sp(pWS)} sc1 @@xa
    global_load_dwordx4 {vr(vSR+4,4)}, v5, {sp(pWS)} offset:16 sc1 @@xa""")

vEPS = 41
vP0, vP1 = 42, 43
ACC_C = 96
def BF(tp, q): return 128 + 4*(4*(tp & 3) + q)
def AF(ch, q): return 192 + 4*(4*ch + q)
def la(ch, q, dst, isa=False):
    k = (7 - ch)//2; par = (7 - ch) % 2
    od = 128*par + 16*(3 - q)
    f = ar if isa else vr
    return [f"ds_read2_b32 {f(dst,2)}, v{vKA+k} offset0:{od} offset1:{od+1} @@af{ch}_{q}", f"ds_read2_b32 {f(dst+2,2)}, v{vKA+k} offset0:{od+2} offset1:{od+3} @@af{ch}_{q}"]
def lb(tp, q):
    return [f"ds_read_b128 {vr(BF(tp,q),4)}, v{vUB} offset:{512*tp + 64*(3-q)} @@bf{tp}_{q}"]
def a_preload():
    L = []
    for q in range(4):
        for ch in range(4): L.append(la(ch, q, AF(ch, q)))
    return L
def w1_load(n):
    L = []
    g = n // 8
    return (g, f"global_load_dwordx4 {ar(4*n,4)}, v{{A}}, {sp(pWS)} offset:{1024*(n%8) - 4096} sc1 @@w1_{n}")
class Stream:
    def __init__(self, areg, sbase, pat, tag):
        self.areg = areg; self.sbase = sbase; self.pat = pat; self.tag = tag; self.g = None
    def load(self, n, dst):
        L = []
        g = n // 8
        if self.g is None:
            L += [f"s_add_u32 s{sT+5}, s{self.sbase}, {4096 + 8192*g}", f"v_add_u32 v{self.areg}, s{sT+5}, v{self.pat}"]
        elif g != self.g:
            L += [f"v_add_u32 v{self.areg}, {8192*(g - self.g)}, v{self.areg}"]
        self.g = g
        L.append(f"global_load_dwordx4 {dst}, v{self.areg}, {sp(pWS)} offset:{1024*(n%8) - 4096} sc1 @@{self.tag}{n}")
        return L

def pro_half(half, T=64):
    G_ = []
    for k in range(4):
        S = vSR + 2*k
        G_ += [[f"v_mul_f32 v{S}, s{sC}, v{S}"], [f"v_fma_f32 v{S+1}, v{S+1}, s{sC}, v{vEPS}"], [f"v_fma_f32 v{S+1}, -v{S}, v{S}, v{S+1}"], [f"v_rsq_f32 v{S+1}, v{S+1}"]]
    xf = T; uf = T + 8; pk = T + 16
    for c in range(2):
        for k in range(4):
            x = vXR + 2*c + k//2
            G_.append([f"v_lshlrev_b32 v{xf+4*c+k}, 16, v{x}" if k % 2 == 0 else f"v_and_b32 v{xf+4*c+k}, 0xffff0000, v{x}"])
    for k in range(4):
        S = vSR + 2*k
        G_.append([f"v_mul_f32 v{S}, v{S}, v{S+1}"])
    for c in range(2):
        for k in range(4):
            S = vSR + 2*k
            G_.append([f"v_fma_f32 v{uf+4*c+k}, v{xf+4*c+k}, v{S+1}, -v{S}"])
    for c in range(2):
        for h in range(2): G_.append([f"v_cvt_pk_bf16_f32 v{pk+2*c+h}, v{uf+4*c+2*h}, v{uf+4*c+2*h+1}"])
    for c in range(2):
        G_.append([f"ds_write_b64 v{vUW}, {vr(pk+2*c,2)} offset:{UC*c + 2048*half}"])
    for c in range(2):
        for k in range(4):
            p = pk + 2*c + k//2
            G_.append([f"v_lshlrev_b32 v{uf+4*c+k}, 16, v{p}" if k % 2 == 0 else f"v_and_b32 v{uf+4*c+k}, 0xffff0000, v{p}"])
    for c in range(2):
        for k in range(4): G_.append([f"v_fmac_f32 v{xf+4*c+k}, v{uf+4*c+k}, v{vDS+c}"])
        G_.append([f"ds_write_b128 v{vBW}, {vr(xf+4*c,4)} offset:{8192*c + 4096*half}"])
    return G_

def epi_writes(half):
    return [[f"ds_write_b128 v{vYW}, {vr(ACC_C + 4*(4*half+T),4)} offset:{16384*half + 1024*T}"] for T in range(4)]
def epi_reads(half, R=64):
    G_ = []
    for Tp in range(2):
        G_.append([f"ds_read_b128 {vr(R+12*Tp,4)}, v{vYR} offset:{16384*half + 1024*Tp} @@er{half}"])
        G_.append([f"ds_read_b128 {vr(R+12*Tp+4,4)}, v{vYR} offset:{16384*half + 1024*Tp + 4096} @@er{half}"])
        G_.append([f"ds_read_b128 {vr(R+12*Tp+8,4)}, v{vBR} offset:{4096*half + 1024*Tp} @@er{half}"])
    return G_
def epi_fin(half, R=64):
    G_ = []
    G_.append([f"s_add_u32 s{sT+5}, s{sXMID}, {32*XT*half}", f"v_add_u32 v4, s{sT+5}, v{vYST}"])
    G_.append([f"v_add_u32 v5, {8*XT}, v4"])
    G_.append([f"WAITLG er{half}"])
    for Tp in range(2):
        b = R + 12*Tp
        for r in range(4): G_.append([f"v_add_f32 v{b+r}, v{b+r}, v{b+4+r}"])
        for r in range(4): G_.append([f"v_add_f32 v{b+r}, v{b+r}, v{b+8+r}"])
        for h in range(2): G_.append([f"v_cvt_pk_bf16_f32 v{R+24+2*Tp+h}, v{b+2*h}, v{b+2*h+1}"])
        G_.append([f"global_store_dwordx2 v{4+Tp}, {vr(R+24+2*Tp,2)}, {sp(pWS)} sc1 @@es{half}"])
    return G_

def signal8(e, foff):
    sk = e.lab('sg')
    return split(f"""s_cmp_lg_u32 s{sW}, 0
    s_cbranch_scc1 {sk}
    s_add_u32 s{sT+5}, s{sFL}, {foff}
    v_add_u32 v9, s{sT+5}, v{vSIG}
    s_mov_b64 exec, 0xff
    CONDB
    global_atomic_add v9, v{vONE}, {sp(pWS)} sc1
    CONDE
    s_mov_b64 exec, -1
    {sk}:""")
def poll8_issue(foff, tag, sfl=None, va=None, vv=None):
    va = va or vP1; vv = vv or vP0
    return split(f"""s_add_u32 s{sT+5}, s{sfl or sFL}, {foff}
    v_add_u32 v{va}, s{sT+5}, v{vPOL}
    global_load_dword v{vv}, v{va}, {sp(pWS)} sc1 @@{tag}""")
def poll8_check(e, tag, tgt, va=None, vv=None):
    va = va or vP1; vv = vv or vP0
    chk = [f"v_cmp_gt_u32 vcc, {tgt}, v{vv}"]
    return [f"WAITVM {tag}"] + slow_poll(e, chk, [f"global_load_dword v{vv}, v{va}, {sp(pWS)} sc1"], tag)

def tile_dma(p, areg):
    G_ = []
    G_.append([f"s_add_u32 s{sT+5}, s{sGRP}, {16*p}", f"s_mul_i32 s{sT+5}, s{sT+5}, {XT}", f"s_add_u32 s{sT+5}, s{sT+5}, s{sXMID}", f"v_add_u32 v{areg}, s{sT+5}, v{vTD}"])
    for k in range(7):
        L = []
        if k == 0: L += [f"s_add_u32 m0, s{sW7}, {L_XT + p*XT}", "s_nop 0"]
        if k == 4: L += [f"v_add_u32 v{areg}, 4096, v{areg}", f"s_add_u32 m0, s{sW7}, {L_XT + p*XT + 4096}", "s_nop 0"]
        L.append(f"global_load_lds_dwordx4 v{areg}, {sp(pWS)} offset:{1024*(k%4)} sc1 @@tile{p}")
        G_.append(L)
    return G_

def mfma16(T, a, b, first):
    acc = vr(ACC_C + 4*T, 4)
    return f"v_mfma_f32_16x16x32_bf16 {acc}, {a}, {b}, {'0' if first else acc}"

def conv(e, W1):
    o = e.opt
    e(f"s_mov_b32 s{sC}, {hex(f2u(1.0/448))}\ns_mov_b32 s{sC+1}, {hex(f2u(-1.4426950408889634))}\nv_mov_b32 v{vEPS}, {hex(f2u(1e-5))}")
    w1q = list(range(o.w1_first, 56))
    def w1n(k):
        out = []
        for _ in range(k):
            if w1q:
                n = w1q.pop(0); out.append(W1.load(n, ar(4*n, 4)))
        return out
    if not o.preA:
        for g in a_preload(): e(g)
    for g in w1n(4): e(g)
    e("WAITVM xa")
    for g in pro_half(0): e(g)
    e.stamp('proA')
    e("WAITVM xs1? at1?\ns_waitcnt lgkmcnt(0)\ns_barrier")
    sk = e.lab('cyb')
    e(f"s_cmp_eq_u32 s{sLAYER}, 0\ns_cbranch_scc1 {sk}")
    e("CONDB"); e(signal8(e, F_CYB - 0xA000)); e("CONDE")
    e(f"{sk}:")
    for q in range(4):
        for tp in range(4): e(lb(tp, q))
    first = set()
    anchors = []
    for q in range(4):
        for tp in range(4):
            for ch in range(4 - tp):
                T = tp + ch
                pre = [f"WAITLG bf{tp}_{q} af{ch}_{q}"]
                anchors.append(pre + [mfma16(T, vr(AF(ch, q), 4), vr(BF(tp, q), 4), T not in first)]); first.add(T)
    items = []
    ring = {}
    rl = [(ch, q) for ch in range(4, 8) for q in range(4)]
    for k in range(8):
        ring[rl[k]] = k
        items.append((6 + 3*k, la(rl[k][0], rl[k][1], 224 + 4*k, True)))
    items += spread(w1n(6), 2, 38)
    items.append((36, poll8_issue(F_CYB - 0xA000, 'pB')))
    e(weave(anchors, items, 8))
    e.stamp('A1')
    anchors = []; use = []
    seq = [(tp, ch, q) for q in range(4) for tp in range(1, 4) for ch in range(1, 4) if tp + ch >= 4]
    seq += [(tp, ch, q) for (ch, q) in rl for tp in range(0, 8 - ch) if tp <= 3]
    lastuse = {}
    for idx, (tp, ch, q) in enumerate(seq):
        lastuse[(ch, q)] = idx
    items = []
    nxt = 8
    for idx, (tp, ch, q) in enumerate(seq):
        T = tp + ch
        pre = []
        if ch >= 4:
            assert (ch, q) in ring, (ch, q)
            a = ar(224 + 4*ring[(ch, q)], 4)
            pre = [f"WAITLG af{ch}_{q}"]
        else: a = vr(AF(ch, q), 4)
        anchors.append(pre + [mfma16(T, a, vr(BF(tp, q), 4), T not in first)]); first.add(T)
        if ch >= 4 and lastuse[(ch, q)] == idx and nxt < 16:
            slot = ring[(ch, q)]; ring[rl[nxt]] = slot
            items.append((idx + 1, la(rl[nxt][0], rl[nxt][1], 224 + 4*slot, True), 'hard')); nxt += 1
    assert len(anchors) == 64
    items += spread(epi_writes(0), 0, 3)
    items.append((4, ["s_waitcnt lgkmcnt(0)", "s_barrier"], 'hard'))
    items += spread(epi_reads(0), 5, 8)
    items += spread(epi_fin(0), 10, 22)
    items.append((23, poll8_check(e, 'pB', f"s{sTGT}"), 'hard'))
    xb = split(f"""s_add_u32 s{sT+5}, s{sXIN}, {32*XT}
    v_add_u32 v6, s{sT+5}, v{vXA}
    s_add_u32 s{sT+5}, s{sSTOFF}, 8192
    v_add_u32 v7, s{sT+5}, v{vSTA}
    global_load_dwordx2 {vr(vXR,2)}, v6, {sp(pWS)} sc1 @@xb
    global_load_dwordx2 {vr(vXR+2,2)}, v6, {sp(pWS)} offset:64 sc1 @@xb
    global_load_dwordx4 {vr(vSR,4)}, v7, {sp(pWS)} sc1 @@xb
    global_load_dwordx4 {vr(vSR+4,4)}, v7, {sp(pWS)} offset:16 sc1 @@xb""")
    items.append((23.5, xb, 'hard'))
    items += spread(w1n(8), 26, 46)
    items.append((46, ["WAITVM xb"], 'hard'))
    items += spread(pro_half(1), 46.1, 64)
    e(weave(anchors, items, 8))
    e.stamp('A2')
    e("WAITVM es0\ns_waitcnt lgkmcnt(0)\ns_barrier")
    e(signal8(e, F_CXA))
    for q in range(4):
        for tp in range(4, 8): e(lb(tp, q))
    anchors = []
    for q in range(4):
        for tp in range(4, 8):
            for ch in range(8 - tp):
                T = tp + ch
                pre = [f"WAITLG bf{tp}_{q}"] if ch == 0 else []
                anchors.append(pre + [mfma16(T, vr(AF(ch, q), 4), vr(BF(tp, q), 4), False)])
    items = spread(w1n(10), 1, 38)
    items.append((28, poll8_issue(F_CXA, 'pXA')))
    e(weave(anchors, items, 8))
    e.stamp('B')
    for g in epi_writes(1): e(g)
    e(poll8_check(e, 'pXA', 28))
    e.stamp('pXA')
    for g in tile_dma(0, 6): e(g)
    for g in tile_dma(1, 7): e(g)
    e("s_waitcnt lgkmcnt(0)\ns_barrier")
    for g in epi_reads(1): e(g)
    for g in w1n(56): e(g)
    for g in epi_fin(1): e(g)
    e.stamp('epiB')
    return False

ACC = [64, 96]
vTR2 = 44
vS2 = [46, 48]
vSA = 50
vHA = 51
vRWa = 52
vRESa, vRESb = 56, 60
def WDdst(idx):
    if idx < 8: return ar(224 + 4*idx, 4)
    if idx < 34: return vr(152 + 4*(idx - 8), 4)
    return ar(112 + 4*(idx - 34), 4)

def g1_epilogue(p):
    A = ACC[p % 2]; c1, c2 = vS2[p % 2], vS2[p % 2] + 1
    G_ = []
    for r0 in range(0, 16, 2):
        rs = (r0, r0 + 1)
        for r in rs: G_.append([f"v_mul_f32 v{A+r}, v{c1}, v{A+r}"])
        for r in rs: G_.append([f"v_exp_f32 v{A+r}, v{A+r}"])
        for r in rs: G_.append([f"v_fma_f32 v{A+r}, v{A+r}, v{c2}, v{c2}"])
        for r in rs: G_.append([f"v_rcp_f32 v{A+r}, v{A+r}"])
        for r in rs: G_.append([f"v_mul_f32 v{A+r}, v{A+r}, v{A+16+r}"])
        G_.append([f"v_cvt_pk_bf16_f32 v{A+16+r0//2}, v{A+r0}, v{A+r0+1}"])
        if r0 == 6: G_.append([f"global_store_dwordx4 v{vHA}, {vr(A+16,4)}, {sp(pWS)} sc1 @@hs{p}"])
    G_.append([f"global_store_dwordx4 v{vHA}, {vr(A+20,4)}, {sp(pWS)} offset:1024 sc1 @@hs{p}"])
    return G_

def stats_block(e, p):
    R = ACC[p % 2]; sk = e.lab('stb')
    L = [f"s_cmp_lg_u32 s{sJ}, {p}", f"s_cbranch_scc1 {sk}", "CONDB"]
    L += [f"s_add_u32 s{sT+5}, s{sW7}, {p*XT}", f"v_add_u32 v4, s{sT+5}, v{vTR}"]
    for k in range(7):
        L += [f"ds_read_b64_tr_b16 {vr(R+4*k,2)}, v4 offset:{1024*k}", f"ds_read_b64_tr_b16 {vr(R+4*k+2,2)}, v4 offset:{1024*k+256}"]
    L += ["v_mov_b32 v5, 0", "v_mov_b32 v6, 0", f"v_lshlrev_b32 v7, 2, v1", f"s_lshl_b32 s{sT+5}, s{sW}, 8", f"v_add_u32 v9, s{sT+5}, v7", "s_waitcnt lgkmcnt(0)"]
    for k in range(28): L.append(f"v_dot2_f32_bf16 v5, v{R+k}, s{sONES}, v5")
    for k in range(28): L.append(f"v_dot2_f32_bf16 v6, v{R+k}, v{R+k}, v6")
    L += ["s_nop 2", "v_permlane32_swap_b32 v5, v6", "s_nop 1", "v_add_f32 v5, v5, v6", f"ds_write_b32 v9, v5 offset:0", "s_waitcnt lgkmcnt(0)", "s_barrier"]
    L[-3] = f"ds_write_b32 v9, v5 offset:{L_SX - 131072}"
    L.insert(-3, f"v_add_u32 v9, 131072, v9"); L.insert(-3, f"v_add_u32 v7, 131072, v7")
    o0 = (L_SX - 131072)//256
    L += [f"ds_read2st64_b32 v[{R}:{R+1}], v7 offset0:{o0} offset1:{o0+1}", f"ds_read2st64_b32 v[{R+2}:{R+3}], v7 offset0:{o0+2} offset1:{o0+3}"]
    L += [f"s_add_u32 s{sT+5}, s{sGRP}, {16*p}", f"s_lshl_b32 s{sT+5}, s{sT+5}, 8", f"s_add_u32 s{sT+5}, s{sT+5}, s{sST2}", f"v_add_u32 v9, s{sT+5}, v{vL8}", "s_waitcnt lgkmcnt(0)"]
    L += [f"v_add_f32 v{R}, v{R}, v{R+1}", f"v_add_f32 v{R+2}, v{R+2}, v{R+3}", f"v_add_f32 v{R}, v{R}, v{R+2}", f"v_mov_b32 v{R+1}, v{R}", "s_nop 1", f"v_permlane32_swap_b32 v{R}, v{R+1}"]
    L += [f"v_mul_f32 v{R}, s{sC}, v{R}", f"v_fma_f32 v{R+1}, v{R+1}, s{sC}, v{vEPS}", f"v_fma_f32 v{R+1}, -v{R}, v{R}, v{R+1}", f"v_rsq_f32 v{R+2}, v{R+1}", f"v_sqrt_f32 v{R+3}, v{R+1}",
          f"v_mul_f32 v{R+2}, s{sC+1}, v{R+2}"]
    sk2 = e.lab('stp')
    L += [f"s_cmp_lg_u32 s{sW}, 0", f"s_cbranch_scc1 {sk2}", "s_mov_b32 exec_hi, 0", f"global_store_dwordx2 v9, v[{R+2}:{R+3}], {sp(pWS)} sc1", "s_mov_b32 exec_hi, -1", f"{sk2}:"]
    L += ["CONDE", f"{sk}:"]
    return L

def ch_signal(e, p):
    sk = e.lab('chs')
    return split(f"""s_cmp_lg_u32 s{sW}, 0
    s_cbranch_scc1 {sk}
    s_add_u32 s{sT+5}, s{sCH}, {128*p}
    v_mov_b32 v9, s{sT+5}
    s_mov_b64 exec, 1
    CONDB
    global_atomic_add v9, v{vONE}, {sp(pWS)} sc1
    CONDE
    s_mov_b64 exec, -1
    {sk}:""")
def ch_issue(add, tag):
    return split(f"""s_lshl_b32 s{sT+5}, s{sPP}, 7
    s_add_u32 s{sT+5}, s{sT+5}, s{sCH}
    s_add_u32 s{sT+5}, s{sT+5}, {128*add}
    v_mov_b32 v{vP1}, s{sT+5}
    global_load_dword v{vP0}, v{vP1}, {sp(pWS)} sc1 @@{tag}""")

def g2_epilogue(e, sub):
    A = ACC[sub]; RS = vRESa if sub == 0 else vRESb
    L = []
    for s_ in range(3):
        L += [f"ds_read_b128 {vr(128+8*s_,4)}, v{vRR} offset:{sub*XT + s_*2048} @@rr{sub}", f"ds_read_b128 {vr(132+8*s_,4)}, v{vRR} offset:{sub*XT + s_*2048 + 1024} @@rr{sub}"]
    for r in range(8):
        x = RS + r//2
        L += [f"v_lshlrev_b32 v4, 16, v{x}" if r % 2 == 0 else f"v_and_b32 v4, 0xffff0000, v{x}", f"v_add_f32 v{A+r}, v{A+r}, v4"]
    L.append(f"WAITLG rr{sub}")
    for r in range(8): L.append(f"v_add_f32 v{128+r}, v{128+r}, v{136+r}")
    for r in range(8): L.append(f"v_add_f32 v{A+r}, v{A+r}, v{144+r}")
    for r in range(8): L.append(f"v_add_f32 v{A+r}, v{A+r}, v{128+r}")
    P = A + 8
    for k in range(4): L.append(f"v_cvt_pk_bf16_f32 v{P+k}, v{A+2*k}, v{A+2*k+1}")
    fin = e.lab('fin'); jn = e.lab('g2j')
    L += [f"s_cmp_lg_u32 s{sLAYER}, 0", f"s_cbranch_scc1 {fin}", "CONDB"]
    L += [f"ds_write_b64 v{vOTW}, {vr(P,2)}", f"ds_write_b64 v{vOTW}, {vr(P+2,2)} offset:16"]
    L += ["v_mov_b32 v4, 0", "v_mov_b32 v5, 0"]
    for k in range(4): L.append(f"v_dot2_f32_bf16 v4, v{P+k}, s{sONES}, v4")
    for k in range(4): L.append(f"v_dot2_f32_bf16 v5, v{P+k}, v{P+k}, v5")
    L += [f"s_add_u32 s{sT+5}, s{sXOUT}, {32*XT*sub}", f"v_add_u32 v6, s{sT+5}, v{vXST}", f"v_add_u32 v7, {32*256*sub}, v{vSTAT}"]
    L += ["s_waitcnt lgkmcnt(0)", f"ds_read_b64_tr_b16 {vr(P+4,2)}, v{vOTR}", f"ds_read_b64_tr_b16 {vr(P+6,2)}, v{vOTR} offset:128"]
    L += ["v_permlane32_swap_b32 v4, v5", "s_nop 1", "v_add_f32 v4, v4, v5"]
    L += [f"global_atomic_add_f32 v7, v4, {sp(pWS)} sc1 @@at{sub}"]
    L += ["s_waitcnt lgkmcnt(0)", f"global_store_dwordx4 v6, {vr(P+4,4)}, {sp(pWS)} sc1 @@xs{sub}", f"s_branch {jn}", "CONDE", f"{fin}:", "CONDB"]
    L += [f"v_add_u32 v6, {1024*896*sub}, v{vOST}", f"v_permlane32_swap_b32 v{P}, v{P+2}", f"v_permlane32_swap_b32 v{P+1}, v{P+3}"]
    L += [f"global_store_dwordx4 v6, {vr(P,4)}, {sp(pOUT)}", "CONDE", f"{jn}:"]
    return L

def reduce_writes(sub):
    A = ACC[sub]; L = []
    for pi in range(1, 4):
        L += [f"ds_write_b128 v{vRWa+pi-1}, {vr(A+8*pi,4)} offset:{sub*XT}", f"ds_write_b128 v{vRWa+pi-1}, {vr(A+8*pi+4,4)} offset:{sub*XT + 1024}"]
    return L

def gemms(e):
    o = e.opt
    WD = Stream(8, sWDB, vL16, 'wd')
    HAs = Stream(6, sHA, vHL, 'ha')
    RA = 4
    def pos(p, i, u=0): return 2*(28*p + i) + u
    def bslot(K): return 128 + 4*(K % 6)
    def bload(K):
        p, i = divmod(K, 28)
        a = vTR if p < 2 else vTR2; off = (p % 2)*XT + 1024*i
        r = bslot(K)
        return [f"ds_read_b64_tr_b16 {vr(r,2)}, v{a} offset:{off} @@b{K}", f"ds_read_b64_tr_b16 {vr(r+2,2)}, v{a} offset:{off+256} @@b{K}"]
    e(f"v_add_u32 v{vTR2}, {2*XT}, v{vTR}")
    e(f"s_lshl_b32 s{sCH}, s{sGRP}, 9\ns_add_u32 s{sCH}, s{sCH}, s{sFL}\ns_add_u32 s{sCH}, s{sCH}, {F_CH}")
    e(f"s_lshl_b32 s{sT}, s{sPP}, 4\ns_add_u32 s{sT}, s{sT}, s{sGRP}\ns_mul_i32 s{sHA}, s{sT}, {HT}\ns_add_u32 s{sHA}, s{sHA}, s{sHOFF}\ns_add_u32 s{sHB}, s{sHA}, {32*HT}")
    e("WAITVM tile0 es1\ns_barrier")
    e(signal8(e, F_CXB))
    e.stamp('SP0')
    for K in range(RA): e(bload(K))
    e(stats_block(e, 0))
    anchors = []; items = []
    for p in range(4):
        A = ACC[p % 2]
        for i in range(28):
            K = 28*p + i; r = bslot(K)
            for u in range(2):
                pre = [f"WAITLG b{K}"] if u == 0 else []
                if p == 0: pre.append(f"WAITVM w1_{2*i+u}")
                acc = vr(A + 16*u, 16)
                anchors.append(pre + [f"v_mfma_f32_32x32x16_bf16 {acc}, {ar(8*i+4*u,4)}, {vr(r,4)}, {'0' if i == 0 else acc}"])
            if K + RA < 112: items.append((pos(p, i, 1), bload(K + RA), 'hard'))
        st2a = [f"s_add_u32 s{sT+5}, s{sGRP}, {16*p}", f"s_lshl_b32 s{sT+5}, s{sT+5}, 8", f"s_add_u32 s{sT+5}, s{sT+5}, s{sST2}", f"v_add_u32 v{vSA}, s{sT+5}, v{vL8}"]
        ld = f"global_load_dwordx2 {vr(vS2[p%2],2)}, v{vSA}, {sp(pWS)} sc1"
        items.append((pos(p, 17), st2a + [ld + f" @@s2_{p}"]))
        chk = [f"v_cmp_eq_u32 vcc, 0, v{vS2[p%2]+1}"]
        items.append((pos(p, 28) - 0.5, [f"WAITVM s2_{p}"] + slow_poll(e, chk, [ld], f's2{p}') +
                      [f"s_add_u32 s{sT+5}, s{sGRP}, {16*p}", f"s_mul_i32 s{sT+5}, s{sT+5}, {HT}", f"s_add_u32 s{sT+5}, s{sT+5}, s{sHOFF}", f"v_add_u32 v{vHA}, s{sT+5}, v{vHS}"], 'hard'))
        items += spread(g1_epilogue(p), pos(p + 1, 0) + 3, pos(p + 1, o.epi_len))
        sp_ = []
        w = []
        if p >= 1: w.append(f"hs{p-1}")
        if p < 3: w.append(f"tile{p+1}")
        sp_ = ["WAITVM " + " ".join(w), "s_barrier"]
        if p >= 1: sp_ += ch_signal(e, p - 1)
        if p < 3: sp_ += stats_block(e, p + 1)
        items.append((pos(p, 24) - RA*2 + 7.5 - 0, sp_, 'hard'))
    items.append((pos(0, 21), poll8_issue(F_CXB, 'pXB')))
    items.append((pos(1, 1), poll8_check(e, 'pXB', 28), 'hard'))
    t2 = tile_dma(2, 7); t3 = tile_dma(3, 7)
    items += [(p_, g, 'hard') for (p_, g) in spread(t2 + t3, pos(1, 1) + 0.5, pos(1, 12))]
    wdi = list(range(34))
    for n, idx in enumerate(wdi):
        P_ = pos(0, 6) + (pos(2, 26) - pos(0, 6)) * n / 34.0
        if pos(1, 0) <= P_ < pos(1, 13): P_ = P_ + 0
        items.append((P_, WD.load(idx, WDdst(idx)), 'hard'))
    items.append((pos(2, 10), [f"ds_read_b64_tr_b16 {vr(vRESa,2)}, v{vRES} @@resa", f"ds_read_b64_tr_b16 {vr(vRESa+2,2)}, v{vRES} offset:512 @@resa"]))
    items.append((pos(4, 4), [f"ds_read_b64_tr_b16 {vr(vRESb,2)}, v{vRES} offset:{2*XT} @@resb", f"ds_read_b64_tr_b16 {vr(vRESb+2,2)}, v{vRES} offset:{2*XT+512} @@resb"]))
    items.append((pos(2, 27), ch_issue(0, 'pHa')))
    items.append((pos(3, o.cha_k), ["WAITVM pHa"] + slow_poll(e, [f"v_cmp_gt_u32 vcc, 14, v{vP0}"], [f"global_load_dword v{vP0}, v{vP1}, {sp(pWS)} sc1"], 'pHa'), 'hard'))
    late = []
    for k in range(28):
        free = pos(3, k >> 1, 1) + 1
        late.append((max(free, pos(3, o.cha_k) + 0.1 + 0.5*k), ('h', k)))
    for idx in range(34, 56):
        free = pos(3, 14 + (idx - 34)//2, 1) + 1
        late.append((max(free, pos(3, o.cha_k) + 14.2 + 1.0*(idx - 34)), ('w', idx)))
    late.sort(key=lambda t: t[0])
    for P_, (kind, n) in late:
        items.append((P_, HAs.load(n, ar(4*n, 4)) if kind == 'h' else WD.load(n, WDdst(n)), 'hard'))
    for k in range(28):
        for m in range(2):
            acc = vr(64 + 16*m, 16)
            anchors.append([f"WAITVM wd{2*k+m} ha{k}", f"v_mfma_f32_32x32x16_bf16 {acc}, {WDdst(2*k+m)}, {ar(4*k,4)}, {'0' if k == 0 else acc}"])
    rw = []
    for pi in range(1, 4):
        rw.append([f"s_add_u32 s{sT+5}, s{sW}, {pi}", f"s_and_b32 s{sT+5}, s{sT+5}, 3", f"s_mul_i32 s{sT+5}, s{sT+5}, 6144", f"s_add_u32 s{sT+5}, s{sT+5}, {L_XT + (pi-1)*2048}", f"v_add_u32 v{vRWa+pi-1}, s{sT+5}, v{vL16}"])
    items += spread(rw, pos(4, 14), pos(4, 20))
    items.append((pos(4, o.ch3_k), ["WAITVM hs3", "s_barrier"] + ch_signal(e, 3), 'hard'))
    items.append((pos(4, 26), ch_issue(2, 'pHb')))
    if o.stamps:
        for p in range(1, 5): items.append((pos(p, 0) - 0.1, e.st(f'pass{p-1}'), 'hard'))
    e(weave(anchors, items, 24))
    e.stamp('G2a')
    e(reduce_writes(0))
    e(["WAITVM pHb"] + slow_poll(e, [f"v_cmp_gt_u32 vcc, 14, v{vP0}"], [f"global_load_dword v{vP0}, v{vP1}, {sp(pWS)} sc1"], 'pHb'))
    e.stamp('pHb')
    HBs = Stream(6, sHB, vHL, 'hb')
    for k in range(28): e(HBs.load(k, ar(4*k, 4)))
    e("s_waitcnt lgkmcnt(0)\ns_barrier")
    e("WAITLG resa")
    e(g2_epilogue(e, 0))
    e.stamp('epi_a')
    W1 = Stream(8, sW1B, vL16, 'w1_')
    anchors = []; items = []
    for k in range(28):
        for m in range(2):
            acc = vr(96 + 16*m, 16)
            anchors.append([f"WAITVM hb{k}", f"v_mfma_f32_32x32x16_bf16 {acc}, {WDdst(2*k+m)}, {ar(4*k,4)}, {'0' if k == 0 else acc}"])
        items.append((2*k + 2, W1.load(k, ar(4*k, 4)), 'hard'))
    items.append((2*o.cya_k, ["WAITVM xs0 at0", "s_barrier"] + signal8(e, F_CYA), 'hard'))
    items += spread(a_preload(), 2*17 + 1, 55)
    items.append((2*24, poll8_issue(F_CYA, 'pYA')))
    e(weave(anchors, items, 24))
    e.stamp('G2b')
    e(reduce_writes(1))
    sk = e.lab('nxa')
    e(f"s_cmp_lg_u32 s{sLAYER}, 0\ns_cbranch_scc1 {sk}\nCONDB")
    e(poll8_check(e, 'pYA', 28))
    e(f"s_mov_b32 s{sXIN}, s{sXOUT}\ns_mov_b32 s{sSTOFF}, {WS_ST3}")
    e(xa_loads())
    e(f"CONDE\n{sk}:")
    e.stamp('pYA')
    e("s_waitcnt lgkmcnt(0)\ns_barrier")
    e("WAITLG resb")
    e(g2_epilogue(e, 1))
    e.stamp('epi_b')

def main():
    ap = argparse.ArgumentParser()
    ap.add_argument('-o', default='k.s')
    ap.add_argument('--stop', default='')
    ap.add_argument('--stamps', action='store_true')
    ap.add_argument('--epi_len', type=int, default=14)
    ap.add_argument('--cha_k', type=int, default=4)
    ap.add_argument('--ch3_k', type=int, default=22)
    ap.add_argument('--cya_k', type=int, default=10)
    o = ap.parse_args()
    o.w1_first = 28; o.preA = True
    e = G(o)
    p0(e)
    e(f"s_lshl_b32 s{sT}, s{sJ}, 2\ns_add_u32 s{sT}, s{sT}, s{sW}\ns_mul_i32 s{sW1B}, s{sT}, 57344\ns_mul_i32 s{sWDB}, s{sDT}, 229376\ns_mul_i32 s{sT}, s{sW}, 57344\ns_add_u32 s{sWDB}, s{sWDB}, s{sT}\ns_add_u32 s{sWDB}, s{sWDB}, {WS_WD}\ns_mul_i32 s{sW7}, s{sW}, 7168")
    for g in a_preload(): e(g)
    W1 = Stream(8, sW1B, vL16, 'w1_')
    for n in range(28): e(W1.load(n, ar(4*n, 4)))
    e.stamp('p0end')
    e.dump_stamps(None, 0)
    done = False
    if o.stop == 'p0':
        e.dump_lds(0, 20480); e.end(); done = True
    if not done:
        e("L_layer:\nLOOPB")
        W1c = Stream(8, sW1B, vL16, 'w1_')
        conv(e, W1c)
        if o.stop == 'conv1':
            e("LOOPE"); e.end(); done = True
    if not done:
        gemms(e)
        e.dump_stamps(sLAYER, 1)
        if o.stop == 'l1':
            e("LOOPE"); e.end(); done = True
    if not done:
        e(f"s_cmp_lg_u32 s{sLAYER}, 0\ns_cbranch_scc1 L_done")
        e(f"s_mov_b32 s{sLAYER}, 1\ns_mov_b32 s{sXMID}, {WS_X[3]}\ns_mov_b32 s{sHOFF}, {WS_H[1]}\ns_mov_b32 s{sFL}, {WS_FL[1]}\ns_mov_b32 s{sST2}, {WS_ST2[1]}\ns_mov_b32 s{sTGT}, 28")
        e("LOOPE\ns_branch L_layer")
        e("L_done:")
        e.end()
    e(e.tail)
    e("L_exit:\ns_endpgm")
    L, errs = resolve(e.L)
    for x in errs[:20]: print("RESOLVE", x, file=sys.stderr)
    L = [('  ' + l if not l.endswith(':') else l) for l in L]
    lines, nins = hz.fix(L)
    errs = hz.check_waits(lines)
    for x in errs[:40]: print("WAITERR", x, file=sys.stderr)
    hdr = f"""; fused persistent kernel v2 (generated by dev/k2/gen2.py)
; @launch grid=({NWG},1,1) block=(256,1,1) lds={LDS_TOTAL}
.amdgcn_target "amdgcn-amd-amdhsa--gfx950"
.text
.globl {NAME}
.p2align 8
.type {NAME},@function
{NAME}:
"""
    ftr = f"""
.section .rodata,"a"
.p2align 6
.amdhsa_kernel {NAME}
  .amdhsa_next_free_vgpr 512
  .amdhsa_next_free_sgpr 102
  .amdhsa_accum_offset 256
  .amdhsa_group_segment_fixed_size 0
  .amdhsa_kernarg_size 112
  .amdhsa_user_sgpr_count 2
  .amdhsa_user_sgpr_kernarg_segment_ptr 1
  .amdhsa_system_sgpr_workgroup_id_x 1
.end_amdhsa_kernel
"""
    if o.stamps: print(';'.join(','.join(n) for n in e.names), file=sys.stderr)
    open(o.o, 'w').write(hdr + '\n'.join(lines) + ftr)
    print(f"wrote {o.o}: {len(lines)} lines, {nins} nop states inserted, {len(errs)} wait errors", file=sys.stderr)

if __name__ == '__main__':
    main()
```

```python
import re, sys
def sp(n): return f"s[{n}:{n+1}]"
def vr(n, k=1): return f"v{n}" if k == 1 else f"v[{n}:{n+k-1}]"
def ar(n, k=1): return f"a{n}" if k == 1 else f"a[{n}:{n+k-1}]"
def f2u(x):
    import struct; return struct.unpack('<I', struct.pack('<f', x))[0]
def split(s):
    out = []
    for l in s.split('\n'):
        l = l.strip()
        if l: out.append(l)
    return out
def is_vm(l): return l.startswith(('global_', 'buffer_'))
def is_lg(l): return l.startswith('ds_')
TRANS = ('v_exp_f32','v_log_f32','v_rcp_f32','v_rsq_f32','v_sqrt_f32','v_sin_f32','v_cos_f32')
def cost(l):
    if l.endswith(':') or l.startswith(('CONDB','CONDE','LOOPB','LOOPE')): return 0
    if l.startswith(TRANS): return 8
    if l.startswith(('WAIT', 's_waitcnt')): return 2
    return 4
def weave(anchors, items, budget, tailflush=True):
    its = sorted([(it[0], k, it[1], len(it) > 2) for k, it in enumerate(items)], key=lambda t: (t[0], t[1]))
    out = []; q = []; ptr = 0
    n = len(anchors)
    while ptr < len(its) and its[ptr][0] < 0:
        out += its[ptr][2]; ptr += 1
    for a in range(n):
        out += anchors[a]
        while ptr < len(its) and its[ptr][0] < a + 1:
            q.append(its[ptr]); ptr += 1
        used = 0; rest = []
        blocked = False
        for it in q:
            c = sum(cost(l) for l in it[2])
            if it[3] or (not blocked and (used + c <= budget or used == 0)):
                out += it[2]; used += c
            else:
                rest.append(it); blocked = True
        q = rest
    for it in q: out += it[2]
    while ptr < len(its):
        out += its[ptr][2]; ptr += 1
    return out
def spread(lines_groups, p0, p1):
    n = len(lines_groups)
    return [(p0 + (p1 - p0) * k / max(n, 1), g if isinstance(g, list) else [g]) for k, g in enumerate(lines_groups)]
def resolve(L):
    lb = [i for i, l in enumerate(L) if l == 'LOOPB']; le = [i for i, l in enumerate(L) if l == 'LOOPE']
    assert len(lb) <= 1 and len(lb) == len(le)
    if lb: order = list(range(0, le[0] + 1)) + list(range(lb[0], len(L)))
    else: order = list(range(len(L)))
    need = {}
    hist = {'vm': [], 'lg': []}
    condstack = []; rid = 0
    errs = []
    def younger(h, k):
        n = 0
        cur = set(condstack) | set(c for c in h[k]['cond'] if isinstance(c, tuple))
        for x in h[k+1:]:
            if set(x['cond']) <= cur: n += 1
        return n
    def apply_wait(kind, n):
        h = hist[kind]
        for k in range(len(h)):
            if not h[k]['done'] and younger(h, k) >= n and not condstack: h[k]['done'] = True
    trav = 0; prev_idx = -1
    for idx in order:
        if idx < prev_idx: trav += 1
        prev_idx = idx
        l = L[idx]
        if l == 'CONDB': rid += 1; condstack.append(rid); continue
        if l.startswith('CONDB '): condstack.append((l.split()[1], trav)); continue
        if l == 'CONDE': condstack.pop(); continue
        if l.startswith('WAITVM') or l.startswith('WAITLG'):
            kind = 'vm' if l.startswith('WAITVM') else 'lg'
            tags = l.split()[1:]
            h = hist[kind]; best = None; found = False
            for t in tags:
                opt = t.endswith('?'); t = t.rstrip('?')
                ks = [k for k, x in enumerate(h) if x['tag'] == t]
                if not ks:
                    if not opt: errs.append(f'{l}: tag {t} never issued')
                    continue
                found = True
                for k in ks:
                    if h[k]['done']: continue
                    y = younger(h, k)
                    best = y if best is None else min(best, y)
            if best is not None:
                cap = 63 if kind == 'vm' else 15
                best = min(best, cap)
                need[idx] = min(need.get(idx, 99), best)
                apply_wait(kind, best)
            else:
                need.setdefault(idx, 99)
            continue
        m = re.match(r's_waitcnt\b(.*)', l)
        if m:
            a = re.search(r'vmcnt\((\d+)\)', l); b = re.search(r'lgkmcnt\((\d+)\)', l)
            if a: apply_wait('vm', int(a.group(1)))
            if b: apply_wait('lg', int(b.group(1)))
            continue
        t = None
        if '@@' in l: t = l.split('@@')[1].strip()
        if is_vm(l): hist['vm'].append(dict(tag=t, cond=tuple(condstack), done=False))
        elif is_lg(l): hist['lg'].append(dict(tag=t, cond=tuple(condstack), done=False))
    out = []
    for idx, l in enumerate(L):
        if l in ('CONDB', 'CONDE', 'LOOPB', 'LOOPE') or l.startswith('CONDB '): continue
        if l.startswith('WAITVM'):
            n = need.get(idx, 99)
            if n < 99: out.append(f's_waitcnt vmcnt({n})')
            continue
        if l.startswith('WAITLG'):
            n = need.get(idx, 99)
            if n < 99: out.append(f's_waitcnt lgkmcnt({n})')
            continue
        if '@@' in l: l = l.split('@@')[0].rstrip()
        out.append(l)
    return out, errs
```

```python
import sys, os, argparse
sys.path.insert(0, os.path.dirname(os.path.abspath(__file__)))
import hz
from fw import *
NAME = "interleave_layers__ssm_conv_s4d__glu_gated_glu__prompt_kernel"
NWG = 224
NALL = 240
ENG0, ENG1 = 168, 232
WS_W1 = 0x0
WS_WD = 112 * 28672
WS_X = [0x0600000, 0x0800000, 0x0A00000, 0x0C00000]
WS_H = [0x1000000, 0x1800000]
WS_Z = 0x2000000
WS_ST3 = WS_Z
WS_ST2 = [WS_Z + 0x4000, WS_Z + 0x8000]
WS_FL = [WS_Z + 0xC000, WS_Z + 0x16000]
F_CXA, F_CXB, F_CYA, F_CYB, F_CH = 0, 0x2000, 0x4000, 0x6000, 0x8000
F_S1B = 0xA000 + 0x6000
WS_ST1 = 0x2100000
WS_DBG = 0x3000000
WS_STAMP = 0x3800000
XT = 28672
HT = 114688
L_KP = 0; KPC = 8320; KPO = 4160
L_MISC = 16640
L_U = L_MISC; UC = 4608
L_OT = L_U + 2 * UC
L_XT = 32768
L_BASE = L_XT + 2 * XT
L_YA = L_BASE + 16384
L_YB = L_YA + 16384
L_SX = 147456
LDS_TOTAL = 163840
sW, sX, sGRP, sJ, sDT, sPP = 3, 4, 5, 6, 7, 8
sT = 9
pAU, pLOGA, pAIM, pCRE, pCIM, pLDT, pDSK = 16, 18, 20, 22, 24, 26, 28
pWG, pWU, pWD, pOUT, pDBG, pWS = 32, 34, 36, 38, 40, 42
sLDT, sDSK = 44, 45
sLAYER = 46
sONES = 47
sXIN, sXMID, sXOUT, sHOFF, sSTOFF, sFL, sST2, sTGT = 48, 49, 50, 51, 52, 53, 54, 55
sC = 56
sW1B, sWDB, sHA, sHB, sW7, sCH = 58, 59, 60, 61, 62, 63
sSTAMP = 64

class G:
    def __init__(self, opt):
        self.L = []; self.opt = opt; self.nlab = 0; self.names = []; self.seg = []; self.tail = []; self.nst = 0; self.inloop = False
    def __call__(self, s):
        if isinstance(s, list): self.L += s
        else: self.L += split(s)
    def lab(self, p='L'):
        self.nlab += 1; return f"{p}_{self.nlab}"
    def st(self, name, fine=False):
        if not self.opt.stamps: return []
        if self.opt.fine >= 0 and self.inloop and not fine: return []
        if self.opt.only and name not in self.opt.only.split(','): return []
        k = len(self.seg); assert k < 18, self.seg
        if self.opt.both:
            self.seg += [name, name + '_rt']
            return [f"s_memtime s[{sSTAMP+2*k}:{sSTAMP+2*k+1}]", f"s_memrealtime s[{sSTAMP+2*k+2}:{sSTAMP+2*k+3}]"]
        self.seg.append(name)
        return [f"{'s_memrealtime' if self.opt.rt else 's_memtime'} s[{sSTAMP+2*k}:{sSTAMP+2*k+1}]"]
    def stamp(self, name): self(self.st(name))
    def dump_stamps(self, segidx_sreg=None, segidx=0):
        if not self.opt.stamps: return
        n = len(self.seg)
        self.names.append(list(self.seg)); self.seg = []
        e = self
        e("s_waitcnt lgkmcnt(0)")
        e(f"s_lshl_b32 s100, s2, 2\ns_add_u32 s100, s100, s{sW}\ns_lshl_b32 s100, s100, 8\ns_add_u32 s100, s100, {WS_STAMP}")
        if segidx_sreg is not None: e(f"s_mul_i32 s101, s{segidx_sreg}, 80\ns_add_u32 s100, s100, s101")
        e(f"s_add_u32 s100, s100, {segidx*80}")
        e("v_mov_b32 v63, s100")
        for k in range(n):
            e(f"v_mov_b32 v62, s{sSTAMP+2*k}\nCONDB\nglobal_store_dword v63, v62, {sp(pWS)} offset:{4*k}\nCONDE\ns_nop 0")
    def dump_lds(self, base, nbytes, dst=0):
        e = self
        e("s_waitcnt vmcnt(0) lgkmcnt(0)\ns_barrier")
        e(f"v_lshlrev_b32 v4, 4, v0\ns_mul_i32 s{sT}, s2, {nbytes}\ns_add_u32 s{sT}, s{sT}, {WS_DBG+dst}\nv_add_u32 v5, s{sT}, v4\nv_add_u32 v4, {base}, v4")
        for k in range(nbytes // 4096):
            e(f"ds_read_b128 v[64:67], v4 offset:{(k*4096) % 65536}\ns_waitcnt lgkmcnt(0)\nglobal_store_dwordx4 v5, v[64:67], {sp(pWS)}\nv_add_u32 v5, 4096, v5\ns_nop 1")
            if (k + 1) * 4096 % 65536 == 0: e("v_add_u32 v4, 65536, v4")
    def end(self):
        self("s_waitcnt vmcnt(0)\ns_endpgm")

LOG2E = 0x3FB8AA3B
INV2PI = 0x3E22F983
SPIN = 20000

def slow_poll(e, chk_lines, reload_lines, name):
    lp = e.lab('sp' + name); back = e.lab('bk' + name)
    e.tail += [f"{lp}:", f"s_mov_b32 s{sT+6}, {SPIN}", f"{lp}_l:"] + reload_lines + ["s_waitcnt vmcnt(0)"] + chk_lines + \
              [f"s_cbranch_vccz {back}", f"s_sub_u32 s{sT+6}, s{sT+6}, 1", f"s_cmp_lg_u32 s{sT+6}, 0", f"s_cbranch_scc1 {lp}_l", f"s_branch {back}"]
    return chk_lines + [f"s_cbranch_vccnz {lp}", f"{back}:"]

def w0(e, lines):
    sk = e.lab('w0')
    return [f"s_cmp_lg_u32 s{sW}, 0", f"s_cbranch_scc1 {sk}", "CONDB"] + lines + ["CONDE", f"{sk}:"]

def cmul_group(items, T):
    L = []
    for k, (d, a, b) in enumerate(items):
        L.append(f"v_pk_mul_f32 {vr(T+2*k,2)}, {vr(a,2)}, {vr(b,2)} op_sel:[0,0] op_sel_hi:[0,1]")
    for k, (d, a, b) in enumerate(items):
        L.append(f"v_pk_fma_f32 {vr(d,2)}, {vr(a,2)}, {vr(b,2)}, {vr(T+2*k,2)} op_sel:[1,1,0] op_sel_hi:[1,0,1] neg_lo:[1,0,0]")
    return L

L_PK = 0
L_PS = 32768 - 512 + 0
L_PS = 28672
L_BS = [L_XT, L_XT + 55120]
ROWB = 1040
L_AS_OFF = 32 * ROWB
L_KX = L_MISC
TB0 = 0x3E80
L_TBL_ADD = [1024, 1024 + 4096]
vL16 = 2
vXA = 10
vSTA = 11
vONE = 12
vSIG = 13
vPOL = 14
vUW = 15
vBW = 16
vKA = 17
vUB = 21
vYW = 22
vYR = 23
vBR = 24
vYST = 25
vTR = 26
vTD = 27
vHS = 28
vL8 = 29
vRES = 30
vRW = 31
vRR = 32
vOTW = 33; vOTR = 34
vXST = 35
vSTAT = 36
vOST = 37
vHL = 38
vDS = 39
vDS1 = 40

def stats_rows(e, base, rowreg):
    e("v_mov_b32 v90, 0\nv_mov_b32 v91, 0")
    for k in range(28): e(f"v_dot2_f32_bf16 v90, v{base+k}, s{sONES}, v90\nv_dot2_f32_bf16 v91, v{base+k}, v{base+k}, v91")
    for dpp in ["quad_perm:[1,0,3,2]", "quad_perm:[2,3,0,1]", "row_half_mirror"]:
        e(f"v_add_f32_dpp v90, v90, v90 {dpp} row_mask:0xf bank_mask:0xf\nv_add_f32_dpp v91, v91, v91 {dpp} row_mask:0xf bank_mask:0xf")
    e(f"v_lshlrev_b32 v92, 3, v{rowreg}\nv_add_u32 v92, {WS_ST1}, v92")
    e("s_mov_b32 exec_lo, 0x01010101\ns_mov_b32 exec_hi, 0x01010101")
    e(f"global_store_dwordx2 v92, v[90:91], {sp(pWS)} sc1")
    e("s_mov_b64 exec, -1\ns_nop 1")

vXGA = 224
vXGB = 56
def xperm(src_):
    return split(f"""s_mov_b32 s{sT+4}, 0x05040100
    s_mov_b32 s{sT+5}, 0x07060302
    v_perm_b32 v{vXR}, v{src_+1}, v{src_}, s{sT+4}
    v_perm_b32 v{vXR+1}, v{src_+3}, v{src_+2}, s{sT+4}
    v_perm_b32 v{vXR+2}, v{src_+1}, v{src_}, s{sT+5}
    v_perm_b32 v{vXR+3}, v{src_+3}, v{src_+2}, s{sT+5}""")

def p0(e):
    o = e.opt
    e(f"s_cmp_ge_u32 s2, {NALL}\ns_cbranch_scc1 L_exit")
    e("s_load_dwordx16 s[16:31], s[0:1], 0\ns_load_dwordx8 s[32:39], s[0:1], 64\ns_load_dwordx4 s[40:43], s[0:1], 96")
    e(f"v_lshrrev_b32 v3, 6, v0\nv_and_b32 v1, 63, v0\nv_readfirstlane_b32 s{sW}, v3\nv_lshlrev_b32 v2, 4, v1")
    e(f"s_and_b32 s{sX}, s2, 7\ns_lshr_b32 s{sT}, s2, 3\ns_mul_i32 s{sT+1}, s{sT}, 37\ns_lshr_b32 s{sT+1}, s{sT+1}, 8")
    e(f"s_mul_i32 s{sT+2}, s{sT+1}, 7\ns_sub_u32 s{sDT}, s{sT}, s{sT+2}\ns_and_b32 s{sPP}, s{sX}, 1\ns_lshr_b32 s{sGRP}, s{sX}, 1\ns_lshl_b32 s{sGRP}, s{sGRP}, 2\ns_add_u32 s{sGRP}, s{sGRP}, s{sT+1}")
    e(f"s_mul_i32 s{sJ}, s{sPP}, 7\ns_add_u32 s{sJ}, s{sJ}, s{sDT}\ns_mov_b32 s{sONES}, 0x3f803f80")
    e(f"v_lshlrev_b32 v4, 1, v0\ns_lshl_b32 s{sT}, s2, 10\nv_add_u32 v4, s{sT}, v4")
    e("s_waitcnt lgkmcnt(0)")
    e.stamp('start')
    nokp = e.lab('nokp')
    e(f"s_cmp_ge_u32 s2, {NWG}\ns_cbranch_scc1 {nokp}")
    for c in range(2):
        for k, p in enumerate([pLOGA, pAIM, pCRE, pCIM]):
            e(f"global_load_ushort v{64+4*c+k}, v4, {sp(p)} offset:{512*c} @@kp")
    e(f"s_lshl_b32 s{sT}, s2, 2\ns_load_dword s{sLDT}, {sp(pLDT)}, s{sT}\ns_load_dword s{sDSK}, {sp(pDSK)}, s{sT}")
    e(f"{nokp}:")
    nopack = e.lab('nopack'); packld = e.lab('packld'); iswd = e.lab('iswd'); cfg = e.lab('cfg')
    sSRC = 56; sSTR, sFLAG, sA, sB, sROW0, sD2, sSH, sDST = 58, 59, 60, 61, 62, 63, sT+4, sT+5
    e(f"s_cmp_ge_u32 s2, 168\ns_cbranch_scc1 {nopack}")
    e(f"s_cmp_ge_u32 s2, 112\ns_cbranch_scc1 {iswd}")
    e(f"s_bitcmp1_b32 s2, 0\ns_cselect_b32 s{sSRC}, s{pWU}, s{pWG}\ns_cselect_b32 s{sSRC+1}, s{pWU+1}, s{pWG+1}")
    e(f"s_lshr_b32 s{sT}, s2, 1\ns_lshl_b32 s{sB}, s{sT}, 6\ns_mov_b32 s{sA}, 0\ns_mov_b32 s{sSTR}, 3584\ns_mov_b32 s{sFLAG}, {hex(f2u(1.0/448))}\ns_mov_b32 s{sROW0}, 0\ns_mov_b32 s{sD2}, 256\ns_mov_b32 s{sSH}, 9")
    e(f"s_mul_i32 s{sDST}, s{sT}, 57344\ns_and_b32 s{sT}, s2, 1\ns_lshl_b32 s{sT}, s{sT}, 10\ns_add_u32 s{sDST}, s{sDST}, s{sT}")
    e(f"s_branch {cfg}")
    e(f"{iswd}:")
    e(f"s_mov_b32 s{sSRC}, s{pWD}\ns_mov_b32 s{sSRC+1}, s{pWD+1}")
    e(f"s_sub_u32 s{sT}, s2, 112\ns_lshr_b32 s{sT+1}, s{sT}, 3\ns_lshl_b32 s{sB}, s{sT+1}, 7\ns_bfe_u32 s{sT+2}, s{sT}, 0x10002\ns_and_b32 s{sT+3}, s{sT}, 3")
    e(f"s_lshl_b32 s{sA}, s{sT+2}, 6\ns_lshl_b32 s{sT}, s{sT+3}, 5\ns_add_u32 s{sA}, s{sA}, s{sT}\ns_mul_i32 s{sROW0}, s{sT+3}, 448")
    e(f"s_mul_i32 s{sDST}, s{sT+1}, 229376\ns_mul_i32 s{sT}, s{sT+3}, 57344\ns_add_u32 s{sDST}, s{sDST}, s{sT}\ns_lshl_b32 s{sT}, s{sT+2}, 10\ns_add_u32 s{sDST}, s{sDST}, s{sT}\ns_add_u32 s{sDST}, s{sDST}, {WS_WD}")
    e(f"s_mov_b32 s{sSTR}, 896\ns_mov_b32 s{sFLAG}, 0\ns_mov_b32 s{sD2}, 512\ns_mov_b32 s{sSH}, 8")
    e(f"{cfg}:")
    e(f"s_mul_i32 s{sT}, s{sW}, 112\ns_add_u32 s{sT}, s{sT}, s{sROW0}")
    e(f"v_lshrrev_b32 v5, 2, v1\nv_add_u32 v5, s{sT}, v5\nv_mul_lo_u32 v5, v5, s{sSTR}\nv_and_b32 v6, 3, v1\nv_lshlrev_b32 v6, 4, v6\nv_add_u32 v6, s{sA}, v6\nv_and_b32 v6, 127, v6\nv_add3_u32 v5, v5, v6, s{sB}")
    e(f"s_lshl_b32 s{sT}, s{sSTR}, 4\ns_mul_i32 s{sT+1}, s{sW}, 7168\ns_add_u32 s{sT+1}, s{sT+1}, {L_PK}")
    for i in range(7):
        e(f"s_add_u32 m0, s{sT+1}, {1024*i}")
        e(f"global_load_lds_dwordx4 v5, {sp(sSRC)} @@pk")
        if i < 6: e(f"v_add_u32 v5, s{sT}, v5")
    e(f"v_lshrrev_b32 v6, 5, v1\nv_lshlrev_b32 v6, s{sSH}, v6")
    e(f"v_and_b32 v7, 15, v1\nv_lshrrev_b32 v7, 2, v7\nv_lshlrev_b32 v7, 6, v7\nv_add_u32 v6, v6, v7")
    e(f"v_bfe_u32 v7, v1, 4, 1\nv_lshlrev_b32 v7, 5, v7\nv_add_u32 v6, v6, v7\nv_and_b32 v7, 3, v1\nv_lshlrev_b32 v7, 3, v7")
    e(f"v_add3_u32 v7, v6, v7, s{sT+1}\nv_add_u32 v8, s{sD2}, v7\ns_mov_b32 s60, s{sDST}")
    e(f"s_branch {packld}")
    e(f"{nopack}:")
    e(f"s_cmp_ge_u32 s2, {ENG1}\ns_cbranch_scc1 {packld}")
    e(f"s_sub_u32 s61, s2, {ENG0}")
    e(f"v_lshrrev_b32 v5, 3, v1\nv_mul_u32_u24 v5, 896, v5\nv_and_b32 v6, 7, v1\nv_lshlrev_b32 v6, 4, v6\nv_add_u32 v5, v5, v6")
    e(f"s_lshl_b32 s{sC+6}, s{sW}, 13")
    e(f"s_mul_i32 s{sC+1}, s61, {32*896}\ns_lshl_b32 s{sC+2}, s{sW}, 8\ns_add_u32 s{sC+1}, s{sC+1}, s{sC+2}\nv_add_u32 v5, s{sC+1}, v5")
    e(f"s_mul_i32 s{sC+3}, s61, {XT}\ns_add_u32 s{sC+3}, s{sC+3}, s{sC+6}\ns_add_u32 s{sC+3}, s{sC+3}, {WS_X[0]}")
    nk1 = e.lab('nk1')
    for k in range(2):
        if k == 1: e(f"s_cmp_eq_u32 s{sW}, 3\ns_cbranch_scc1 {nk1}")
        e(f"v_add_u32 v6, {128*k}, v5")
        for i in range(4):
            e(f"s_add_u32 m0, s{sC+6}, {4096*k + 1024*i}")
            e(f"global_load_lds_dwordx4 v6, {sp(pAU)}")
            if i < 3: e(f"v_add_u32 v6, {8*896}, v6")
    e(f"{nk1}:")
    e(f"s_mul_i32 s{sT}, s61, 3584\ns_add_u32 s{sT}, s{sT}, {WS_Z}\nv_lshlrev_b32 v5, 4, v0\nv_add_u32 v5, s{sT}, v5")
    e("v_mov_b32 v84, 0\nv_mov_b32 v85, 0\nv_mov_b32 v86, 0\nv_mov_b32 v87, 0")
    e("v_cmp_gt_u32 vcc, 224, v0\ns_mov_b64 exec, vcc")
    e(f"global_store_dwordx4 v5, v[84:87], {sp(pWS)} sc1")
    e("s_mov_b64 exec, -1")
    e(f"v_lshrrev_b32 v7, 4, v1\nv_lshlrev_b32 v7, 10, v7\nv_bfe_u32 v6, v1, 2, 2\nv_lshlrev_b32 v6, 7, v6\nv_and_b32 v8, 3, v1\nv_lshlrev_b32 v8, 3, v8\nv_add3_u32 v7, v7, v6, v8\nv_add_u32 v7, s{sC+6}, v7")
    e(f"v_and_b32 v8, 15, v1\nv_lshlrev_b32 v8, 6, v8\nv_lshrrev_b32 v6, 4, v1\nv_lshlrev_b32 v6, 4, v6\nv_add_u32 v8, v8, v6")
    e(f"s_lshl_b32 s{sT}, s{sW}, 10\nv_add_u32 v89, s{sT}, v2\ns_lshl_b32 s{sT}, s61, 5\ns_lshl_b32 s{sT+1}, s{sW}, 3\ns_add_u32 s{sT}, s{sT}, s{sT+1}\nv_lshrrev_b32 v88, 3, v1\nv_add_u32 v88, s{sT}, v88")
    e(f"{packld}:")
    if o.touch:
        e(f"v_lshlrev_b32 v61, 20, v1\nglobal_load_dword v60, v61, {sp(pWS)}")
    consts(e)
    e(f"s_mov_b32 s{sLAYER}, 0\ns_mov_b32 s{sXIN}, {WS_X[0]}\ns_mov_b32 s{sXMID}, {WS_X[1]}\ns_mov_b32 s{sXOUT}, {WS_X[2]}\ns_mov_b32 s{sHOFF}, {WS_H[0]}\ns_mov_b32 s{sSTOFF}, {WS_ST1}")
    e(f"s_mov_b32 s{sFL}, {WS_FL[0]}\ns_mov_b32 s{sST2}, {WS_ST2[0]}\ns_mov_b32 s{sTGT}, 0")
    e.stamp('consts')
    pk1 = e.lab('pk1'); kpd = e.lab('kpd'); nk2 = e.lab('nk2'); nk3 = e.lab('nk3')
    e(f"s_cmp_lt_u32 s2, {ENG0}\ns_cbranch_scc1 {pk1}")
    e(f"s_cmp_ge_u32 s2, {ENG1}\ns_cbranch_scc1 L_helper")
    e(f"s_waitcnt vmcnt({1+o.touch})\ns_barrier")
    e.stamp('e_ld')
    for c in range(7): e(f"ds_read_b128 {vr(160+4*c,4)}, v89 offset:{4096*c}")
    for s in range(4):
        r = 128 + 4*s
        e(f"ds_read_b64_tr_b16 {vr(r,2)}, v7 offset:{32*s}\nds_read_b64_tr_b16 {vr(r+2,2)}, v7 offset:{32*s + 512}")
    e(f"s_cmp_eq_u32 s{sW}, 3\ns_cbranch_scc1 {nk2}")
    for s in range(4):
        r = 144 + 4*s
        e(f"ds_read_b64_tr_b16 {vr(r,2)}, v7 offset:{4096 + 32*s}\nds_read_b64_tr_b16 {vr(r+2,2)}, v7 offset:{4096 + 32*s + 512}")
    e(f"{nk2}:")
    e(f"v_add_u32 v5, s{sC+3}, v8\nv_add_u32 v6, 4096, v5")
    e("s_waitcnt lgkmcnt(0)")
    e.stamp('e_tr')
    for s in range(4): e(f"global_store_dwordx4 v5, {vr(128+4*s,4)}, {sp(pWS)} offset:{1024*s} sc1")
    e(f"s_cmp_eq_u32 s{sW}, 3\ns_cbranch_scc1 {nk3}")
    for s in range(4): e(f"global_store_dwordx4 v6, {vr(144+4*s,4)}, {sp(pWS)} offset:{1024*s} sc1")
    e(f"{nk3}:")
    stats_rows(e, 160, 88)
    e.stamp('e_st')
    e("s_waitcnt vmcnt(0)\ns_barrier")
    e.stamp('e_ack')
    e(w0(e, [f"s_mov_b64 exec, 1", f"s_and_b32 s{sT}, s2, 3", f"s_lshl_b32 s{sT}, s{sT}, 6", f"v_mov_b32 v4, s{sT}",
             f"global_atomic_add v4, v{vONE}, {sp(pDBG)} sc1", "s_mov_b64 exec, -1"]))
    e(f"s_cmp_ge_u32 s2, {NWG}\ns_cbranch_scc1 L_helper")
    e(f"s_branch {kpd}")
    e(f"{pk1}:")
    e(f"s_waitcnt vmcnt({7+o.touch})")
    e(f"{kpd}:")
    e.stamp('kp')
    def between():
        e.stamp('kg1a')
        pkdone = e.lab('pkdone')
        e(f"s_cmp_ge_u32 s2, 168\ns_cbranch_scc1 {pkdone}")
        e("s_waitcnt vmcnt(0)")
        e.stamp('p0_ld')
        for i in range(7):
            e(f"ds_read_b64_tr_b16 {vr(128+4*i,2)}, v7 offset:{1024*i}\nds_read_b64_tr_b16 {vr(130+4*i,2)}, v8 offset:{1024*i}")
        e("v_mov_b32 v90, 0\ns_waitcnt lgkmcnt(0)")
        for k in range(28): e(f"v_dot2_f32_bf16 v90, v{128+k}, s{sONES}, v90")
        e("s_nop 2\nv_mov_b32 v91, v90\ns_nop 1\nv_permlane32_swap_b32 v90, v91\ns_nop 1\nv_add_f32 v90, v90, v91")
        e(f"v_and_b32 v92, 31, v1\nv_lshlrev_b32 v92, 2, v92\ns_lshl_b32 s{sT}, s{sW}, 7\nv_add_u32 v93, s{sT}, v92")
        e(f"ds_write_b32 v93, v90 offset:{L_PS}\ns_waitcnt lgkmcnt(0)\ns_barrier")
        for w in range(4): e(f"ds_read_b32 v{94+w}, v92 offset:{L_PS+128*w}")
        e(f"s_mul_i32 s{sT}, s{sW}, {7*2048}\ns_add_u32 s{sT}, s{sT}, s60\nv_add_u32 v5, s{sT}, v2")
        e("s_waitcnt lgkmcnt(0)")
        e(f"v_add_f32 v94, v94, v95\nv_add_f32 v96, v96, v97\nv_add_f32 v94, v94, v96\nv_mul_f32 v94, s{sFLAG}, v94")
        for i in range(7):
            for r in range(4):
                v = 128 + 4*i + r
                e(f"v_lshlrev_b32 v95, 16, v{v}\nv_and_b32 v96, 0xffff0000, v{v}\nv_sub_f32 v95, v95, v94\nv_sub_f32 v96, v96, v94\nv_cvt_pk_bf16_f32 v{v}, v95, v96")
            e(f"global_store_dwordx4 v5, {vr(128+4*i,4)}, {sp(pWS)} offset:{(i%2)*2048} sc1")
            if i % 2 == 1: e("v_add_u32 v5, 4096, v5")
        e(f"{pkdone}:")
        e.stamp('p0_pk')
        e(w0(e, [f"global_load_dword v42, v41, {sp(pDBG)} sc1"]))
    kgen1(e, between)
    e.stamp('kg1b')
    e("s_waitcnt vmcnt(0) lgkmcnt(0)")
    e(w0(e, slow_poll(e, [f"v_cmp_gt_u32 vcc, 16, v42"], [f"global_load_dword v42, v41, {sp(pDBG)} sc1"], 's1a')))
    e("s_barrier")
    e(signal8(e, F_S1B))
    e(xa_loads())
    e.stamp('s1a')
    kgen2(e)

def consts(e):
    e(f"v_mov_b32 v{vONE}, 1")
    e("v_and_b32 v41, 3, v1\nv_lshlrev_b32 v41, 6, v41\nv_mov_b32 v42, 0\nv_mov_b32 v43, 0")
    e(f"v_lshrrev_b32 v4, 3, v0\nv_mul_u32_u24 v4, {XT}, v4\nv_and_b32 v5x, 7, v0".replace('v5x', 'v3') + f"\nv_lshlrev_b32 v3, 3, v3\ns_lshl_b32 s{sT}, s2, 7\nv_add3_u32 v{vXA}, v4, v3, s{sT}")
    e(f"v_lshlrev_b32 v{vSTA}, 5, v0")
    e(f"v_lshlrev_b32 v{vSIG}, 10, v1\ns_lshl_b32 s{sT}, s{sX}, 7\nv_add_u32 v{vSIG}, s{sT}, v{vSIG}")
    e(f"v_and_b32 v{vPOL}, 7, v1\nv_lshlrev_b32 v{vPOL}, 7, v{vPOL}\ns_lshl_b32 s{sT}, s{sX}, 10\nv_add_u32 v{vPOL}, s{sT}, v{vPOL}")
    e(f"v_lshlrev_b32 v{vUW}, 3, v0\nv_add_u32 v{vUW}, {L_U + 480}, v{vUW}")
    e(f"v_lshlrev_b32 v{vBW}, 4, v0\nv_add_u32 v{vBW}, {L_BASE}, v{vBW}")
    e("v_and_b32 v4, 15, v1\nv_lshrrev_b32 v3, 4, v1")
    e(f"s_lshr_b32 s{sT}, s{sW}, 1\ns_and_b32 s{sT+1}, s{sW}, 1")
    e(f"v_and_b32 v{vKA+1}, 1, v3\nv_lshlrev_b32 v{vKA+1}, 4, v{vKA+1}\nv_lshrrev_b32 v{vKA+2}, 1, v3\nv_lshlrev_b32 v{vKA+2}, 5, v{vKA+2}\nv_sub_u32 v{vKA+3}, v{vKA+1}, v{vKA+2}")
    e(f"s_lshl_b32 s{sT+3}, s{sT+1}, 8")
    e(f"s_mul_i32 s{sT+2}, s{sT}, {UC}\ns_sub_u32 s{sT+2}, s{sT+2}, s{sT+3}\ns_add_u32 s{sT+2}, s{sT+2}, {L_U + 480 - 192}")
    e(f"v_lshlrev_b32 v{vUB}, 5, v4\nv_add3_u32 v{vUB}, v{vUB}, v{vKA+3}, s{sT+2}")
    e(f"s_mul_i32 s{sT+2}, s{sT}, {KPC}\ns_sub_u32 s{sT+2}, s{sT+2}, s{sT+3}\ns_add_u32 s{sT+2}, s{sT+2}, {L_KP + 4094 - 192 - 3584}")
    e(f"v_lshlrev_b32 v{vKA+1}, 1, v4\nv_sub_u32 v{vKA+1}, v{vKA+3}, v{vKA+1}\nv_add_u32 v{vKA+1}, s{sT+2}, v{vKA+1}")
    e(f"v_and_b32 v{vKA+2}, 1, v4\nv_mov_b32 v{vKA+3}, 4158\nv_cmp_eq_u32 vcc, 0, v{vKA+2}\nv_cndmask_b32 v{vKA+2}, 0, v{vKA+3}, vcc\nv_add_u32 v{vKA}, v{vKA+1}, v{vKA+2}")
    for k in range(1, 4): e(f"v_add_u32 v{vKA+k}, {1024*k}, v{vKA}")
    e(f"s_lshl_b32 s{sT+2}, s{sW}, 12\ns_add_u32 s{sT+2}, s{sT+2}, {L_YA}\nv_add_u32 v{vYW}, s{sT+2}, v2")
    e(f"s_lshl_b32 s{sT+2}, s{sT}, 13\ns_lshl_b32 s{sT+3}, s{sT+1}, 11\ns_add_u32 s{sT+2}, s{sT+2}, s{sT+3}\ns_add_u32 s{sT+3}, s{sT+2}, {L_YA}\nv_add_u32 v{vYR}, s{sT+3}, v2")
    e(f"s_add_u32 s{sT+2}, s{sT+2}, {L_BASE}\nv_lshlrev_b32 v{vBR}, 6, v4\nv_lshlrev_b32 v{vYST}, 4, v3\nv_add3_u32 v{vBR}, v{vBR}, v{vYST}, s{sT+2}")
    e(f"v_lshrrev_b32 v{vYST}, 1, v4\nv_mul_u32_u24 v{vYST}, {XT}, v{vYST}\nv_and_b32 v4, 1, v4\nv_lshlrev_b32 v4, 5, v4\nv_lshlrev_b32 v3, 3, v3\nv_add3_u32 v{vYST}, v{vYST}, v4, v3")
    e(f"s_mul_i32 s{sT+2}, s{sT+1}, {16*XT}\ns_lshl_b32 s{sT+3}, s2, 7\ns_add_u32 s{sT+2}, s{sT+2}, s{sT+3}\ns_lshl_b32 s{sT+3}, s{sT}, 6\ns_add_u32 s{sT+2}, s{sT+2}, s{sT+3}\nv_add_u32 v{vYST}, s{sT+2}, v{vYST}")
    e(f"v_bfe_u32 v3, v1, 2, 2\nv_lshlrev_b32 v3, 6, v3\nv_bfe_u32 v4, v1, 4, 1\nv_lshlrev_b32 v4, 5, v4\nv_add_u32 v3, v3, v4\nv_and_b32 v4, 3, v1\nv_lshlrev_b32 v4, 3, v4\nv_add_u32 v3, v3, v4")
    e(f"v_lshrrev_b32 v4, 5, v1\nv_lshlrev_b32 v{vTR}, 9, v4\nv_add3_u32 v{vTR}, v{vTR}, v3, {L_XT}".replace(f"v3, {L_XT}", "v3, 0") + f"\nv_add_u32 v{vTR}, {L_XT}, v{vTR}")
    e(f"v_lshlrev_b32 v{vRES}, 8, v4\nv_add_u32 v{vRES}, v{vRES}, v3\ns_mul_i32 s{sT+2}, s{sPP}, {XT}\ns_lshl_b32 s{sT+3}, s{sDT}, 12\ns_add_u32 s{sT+2}, s{sT+2}, s{sT+3}\ns_lshl_b32 s{sT+3}, s{sW}, 10\ns_add_u32 s{sT+2}, s{sT+2}, s{sT+3}\ns_add_u32 s{sT+2}, s{sT+2}, {L_XT}\nv_add_u32 v{vRES}, s{sT+2}, v{vRES}")
    e(f"s_mul_i32 s{sT+2}, s{sW}, 7168\nv_add_u32 v{vTD}, s{sT+2}, v2")
    e(f"s_lshl_b32 s{sT+2}, s{sJ}, 2\ns_add_u32 s{sT+2}, s{sT+2}, s{sW}\ns_lshl_b32 s{sT+2}, s{sT+2}, 11\nv_add_u32 v{vHS}, s{sT+2}, v2")
    e(f"v_and_b32 v{vL8}, 31, v1\nv_lshlrev_b32 v{vL8}, 3, v{vL8}")
    e(f"s_mul_i32 s{sT+2}, s{sW}, 28672\nv_add_u32 v{vHL}, s{sT+2}, v2")
    e(f"s_mul_i32 s{sT+2}, s{sW}, 6144\ns_add_u32 s{sT+2}, s{sT+2}, {L_XT}\nv_add_u32 v{vRR}, s{sT+2}, v2")
    e(f"v_and_b32 v{vOTW}, 7, v1\nv_lshlrev_b32 v{vOTW}, 5, v{vOTW}\nv_bfe_u32 v3, v1, 3, 2\nv_mul_u32_u24 v3, 384, v3\nv_lshlrev_b32 v4, 3, v4\nv_add3_u32 v{vOTW}, v{vOTW}, v3, v4")
    e(f"s_mul_i32 s{sT+2}, s{sW}, 1536\ns_add_u32 s{sT+2}, s{sT+2}, {L_OT}\nv_add_u32 v{vOTW}, s{sT+2}, v{vOTW}")
    e(f"v_bfe_u32 v{vOTR}, v1, 2, 2\nv_lshlrev_b32 v{vOTR}, 5, v{vOTR}\nv_lshrrev_b32 v3, 4, v1\nv_mul_u32_u24 v3, 384, v3\nv_and_b32 v4, 3, v1\nv_lshlrev_b32 v4, 3, v4\nv_add3_u32 v{vOTR}, v{vOTR}, v3, v4\nv_add_u32 v{vOTR}, s{sT+2}, v{vOTR}")
    e(f"s_lshl_b32 s{sT+3}, s{sPP}, 4\ns_add_u32 s{sT+3}, s{sT+3}, s{sGRP}")
    e(f"s_mul_i32 s{sT+2}, s{sT+3}, {XT}\ns_lshl_b32 s{sT+4}, s{sDT}, 12\ns_add_u32 s{sT+2}, s{sT+2}, s{sT+4}\ns_lshl_b32 s{sT+4}, s{sW}, 10\ns_add_u32 s{sT+2}, s{sT+2}, s{sT+4}")
    e(f"v_and_b32 v{vXST}, 15, v1\nv_lshlrev_b32 v{vXST}, 6, v{vXST}\nv_lshrrev_b32 v3, 4, v1\nv_lshlrev_b32 v3, 4, v3\nv_add3_u32 v{vXST}, v{vXST}, v3, s{sT+2}")
    e(f"v_lshrrev_b32 v3, 5, v1\nv_lshlrev_b32 v4, 2, v3\ns_lshl_b32 s{sT+2}, s{sT+3}, 8\ns_add_u32 s{sT+2}, s{sT+2}, {WS_ST3}\nv_add3_u32 v{vSTAT}, v{vL8}, v4, s{sT+2}")
    e(f"v_and_b32 v{vOST}, 31, v1\ns_lshl_b32 s{sT+2}, s{sT+3}, 5\nv_add_u32 v{vOST}, s{sT+2}, v{vOST}\nv_mul_u32_u24 v{vOST}, 896, v{vOST}\nv_lshlrev_b32 v3, 4, v3\ns_lshl_b32 s{sT+2}, s{sDT}, 7\ns_lshl_b32 s{sT+4}, s{sW}, 5\ns_add_u32 s{sT+2}, s{sT+2}, s{sT+4}\nv_add3_u32 v{vOST}, v{vOST}, v3, s{sT+2}")

def kgen1(e, between):
    lp = e.lab('kg1')
    e("s_waitcnt lgkmcnt(0)")
    e(f"s_lshl_b32 s{sT}, s{sDSK}, 16\ns_and_b32 s{sT+1}, s{sDSK}, 0xffff0000\nv_mov_b32 v{vDS}, s{sT}\nv_mov_b32 v{vDS1}, s{sT+1}")
    e(f"s_lshl_b32 s{sT+4}, s{sLDT}, 16")
    e(f"s_lshl_b32 s{sT}, s{sW}, 8\ns_add_u32 s{sT+5}, s{sT}, {L_BS[0]}\ns_mov_b32 s{sT+3}, 0")
    e(f"{lp}:")
    lar, aim, cr, ci = 64, 65, 66, 67
    dt = 72
    e(f"s_mov_b32 m0, s{sT+5}")
    e(f"v_mov_b32 v{dt}, s{sT+4}\nv_mul_f32 v{dt}, {hex(LOG2E)}, v{dt}\nv_exp_f32 v{dt}, v{dt}")
    for r in (lar, aim, cr, ci): e(f"v_lshlrev_b32 v{r}, 16, v{r}")
    e(f"v_mul_f32 v{lar}, {hex(LOG2E)}, v{lar}\nv_exp_f32 v{lar}, v{lar}")
    e(f"v_cvt_pk_bf16_f32 v{dt}, v{dt}, v{dt}\nv_lshlrev_b32 v{dt}, 16, v{dt}")
    e(f"v_cvt_pk_bf16_f32 v{lar}, v{lar}, v{lar}\nv_lshlrev_b32 v{lar}, 16, v{lar}")
    e(f"v_mul_f32 v{lar}, v{lar}, v{dt}\nv_mul_f32 v{aim}, v{aim}, v{dt}\nv_mul_f32 v{cr}, v{cr}, v{dt}\nv_mul_f32 v{ci}, v{ci}, v{dt}")
    e(f"v_mul_f32 v{lar}, {hex(f2u(-1.4426950408889634))}, v{lar}\nv_mul_f32 v{aim}, {hex(INV2PI)}, v{aim}")
    E1, E8, E256, E512, E1024 = 74, 76, 78, 80, 82
    lst = ((E1, 1), (E8, 8), (E256, 256), (E512, 512), (E1024, 1024))
    for k, (reg, p) in enumerate(lst):
        if p == 1: e(f"v_mov_b32 v{84+k}, v{lar}\nv_fract_f32 v{90+k}, v{aim}")
        else: e(f"v_mul_f32 v{84+k}, {hex(f2u(float(p)))}, v{lar}\nv_mul_f32 v{90+k}, {hex(f2u(float(p)))}, v{aim}")
    for k in range(1, 5): e(f"v_fract_f32 v{90+k}, v{90+k}")
    for k in range(5): e(f"v_exp_f32 v{84+k}, v{84+k}")
    for k, (reg, p) in enumerate(lst): e(f"v_cos_f32 v{reg}, v{90+k}\nv_sin_f32 v{reg+1}, v{90+k}")
    for k, (reg, p) in enumerate(lst): e(f"v_mul_f32 v{reg}, v{reg}, v{84+k}\nv_mul_f32 v{reg+1}, v{reg+1}, v{84+k}")
    T = 96
    def wr(row_off, reg, neg):
        return [f"v_cvt_pk_bf16_f32 v{104 + (wr.k % 4)}, v{reg}, {'-' if neg else ''}v{reg+1}", f"ds_write_addtid_b32 v{104 + (wr.k % 4)} offset:{row_off}"]
    wr.k = 0
    def w(row_off, reg, neg=False):
        e(wr(row_off, reg, neg)); wr.k += 1
    E16, E24, E32 = 108, 110, 112
    e2, e3, e4, e5, e6, e7 = 114, 116, 118, 120, 122, 124
    B = [128, 130, 132, 134]
    e(f"v_add_f32 v{B[0]}, v{cr}, v{cr}\nv_add_f32 v{B[0]+1}, v{ci}, v{ci}")
    e(cmul_group([(E16, E8, E8), (e2, E1, E1), (B[1], B[0], E8)], T))
    e("v_mov_b32 v107, 0x3f80"); e(f"ds_write_addtid_b32 v107 offset:{L_AS_OFF}")
    w(L_AS_OFF + 1*ROWB, E1); w(0, B[0], True)
    e(cmul_group([(E24, E16, E8), (E32, E16, E16), (e3, e2, E1), (e4, e2, e2)], T))
    w(L_AS_OFF + 2*ROWB, e2); w(1*ROWB, B[1], True)
    E768 = 126
    e(cmul_group([(B[2], B[0], E16), (B[3], B[0], E24), (E768, E512, E256), (e5, e4, E1)], T))
    w(L_AS_OFF + 3*ROWB, e3); w(L_AS_OFF + 4*ROWB, e4); w(L_AS_OFF + 8*ROWB, E256); w(L_AS_OFF + 12*ROWB, E512); w(L_AS_OFF + 16*ROWB, E1024)
    X = [136, 138, 140, 142]
    e(cmul_group([(e6, e4, e2), (e7, e4, e3), (X[0], E256, e2), (X[1], E256, e4)], T))
    w(2*ROWB, B[2], True); w(3*ROWB, B[3], True); w(L_AS_OFF + 5*ROWB, e5); w(L_AS_OFF + 14*ROWB, E768)
    Y = [144, 146, 148, 150]
    e(cmul_group([(Y[0], E256, e6), (Y[1], E512, e4), (Y[2], E768, e4), (Y[3], E1024, E256)], T))
    w(L_AS_OFF + 6*ROWB, e6); w(L_AS_OFF + 7*ROWB, e7); w(L_AS_OFF + 9*ROWB, X[0]); w(L_AS_OFF + 10*ROWB, X[1])
    e(cmul_group([(X[0], E1024, E512), (X[1], E1024, E768), (X[2], E1024, E1024)], T))
    w(L_AS_OFF + 11*ROWB, Y[0]); w(L_AS_OFF + 13*ROWB, Y[1]); w(L_AS_OFF + 15*ROWB, Y[2]); w(L_AS_OFF + 17*ROWB, Y[3])
    B2 = [152, 154, 156, 158]
    cur, nxt = B, B2
    first = True
    for blk in range(1, 8):
        e(cmul_group([(nxt[k], cur[k], E32) for k in range(4)], T))
        if first:
            w(L_AS_OFF + 18*ROWB, X[0]); w(L_AS_OFF + 19*ROWB, X[1]); w(L_AS_OFF + 20*ROWB, X[2]); first = False
        else:
            for k in range(4): w((4*(blk-1) + k)*ROWB, cur[k], True)
        cur, nxt = nxt, cur
    for k in range(4): w((28 + k)*ROWB, cur[k], True)
    for k in range(4): e(f"v_mov_b32 v{64+k}, v{68+k}")
    e(f"s_and_b32 s{sT+4}, s{sLDT}, 0xffff0000\ns_add_u32 s{sT+5}, s{sT+5}, {L_BS[1]-L_BS[0]}\ns_add_u32 s{sT+3}, s{sT+3}, 1\ns_cmp_eq_u32 s{sT+3}, 2\ns_cbranch_scc1 {lp}_done")
    between()
    e(f"s_branch {lp}\n{lp}_done:")

def kgen2(e):
    e(f"s_lshr_b32 s{sT}, s{sW}, 1\ns_mul_i32 s{sT}, s{sT}, 55120\ns_and_b32 s{sT+1}, s{sW}, 1\ns_lshl_b32 s{sT+2}, s{sT+1}, 9\ns_add_u32 s{sT}, s{sT}, s{sT+2}\ns_add_u32 s{sT}, s{sT}, {L_XT}")
    e(f"v_and_b32 v4, 31, v1\nv_mul_u32_u24 v4, {ROWB}, v4\nv_lshrrev_b32 v5, 5, v1\nv_lshlrev_b32 v5, 4, v5\nv_add3_u32 v4, v4, v5, s{sT}")
    for ks in range(16):
        e(f"ds_read_b128 {vr(96+8*ks,4)}, v4 offset:{32*ks} @@kb{ks}\nds_read_b128 {vr(100+8*ks,4)}, v4 offset:{L_AS_OFF+32*ks} @@kb{ks}")
    e("v_and_b32 v82, 31, v1")
    e("v_mov_b32 v80, v82")
    e("v_lshlrev_b32 v83, 1, v82\nv_add_u32 v83, 240, v83\nv_cmp_le_u32 vcc, 8, v82\nv_cndmask_b32 v80, v80, v83, vcc")
    e("v_and_b32 v83, 1, v82\nv_lshlrev_b32 v83, 2, v83\nv_bfe_u32 v84, v82, 1, 1\nv_lshlrev_b32 v84, 8, v84\nv_add3_u32 v83, v83, v84, 0\nv_add_u32 v83, 512, v83")
    e("v_cmp_le_u32 vcc, 12, v82\nv_cndmask_b32 v80, v80, v83, vcc")
    e("v_lshlrev_b32 v83, 8, v82\nv_subrev_u32 v83, 3072, v83\nv_cmp_le_u32 vcc, 16, v82\nv_cndmask_b32 v80, v80, v83, vcc")
    e("v_cvt_f32_u32 v80, v80")
    e(f"v_mov_b32 v81, {hex(f2u(8.0))}\nv_mov_b32 v83, {hex(f2u(16.0))}\nv_cmp_le_u32 vcc, 20, v82\nv_cndmask_b32 v81, v81, v83, vcc")
    e(f"v_lshrrev_b32 v83, 5, v1\nv_lshlrev_b32 v83, 2, v83\ns_lshl_b32 s{sT+2}, s{sT+1}, 4\nv_add_u32 v83, s{sT+2}, v83\nv_cvt_f32_u32 v83, v83")
    e("v_fma_f32 v84, v81, v83, v80")
    e("v_add_f32 v85, v84, v81\nv_add_f32 v86, v85, v81\nv_add_f32 v87, v86, v81")
    e(f"s_mov_b32 s{sT+2}, {hex(f2u(8.0))}")
    for k in range(4): e(f"v_fma_f32 v{88+k}, v81, s{sT+2}, v{84+k}")
    e(f"s_mov_b32 s{sT+2}, {hex(f2u(2064.0))}")
    for k in range(8): e(f"v_med3_f32 v{84+k}, v{84+k}, 0.5, s{sT+2}")
    for k in range(4): e(f"v_cvt_pk_bf16_f32 v{84+2*k}, v{84+2*k}, v{85+2*k}")
    for k in range(4): e(f"v_lshrrev_b32 v{85+2*k}, 15, v{84+2*k}\nv_lshlrev_b16 v{84+2*k}, 1, v{84+2*k}")
    e(f"s_lshr_b32 s{sT}, s{sW}, 1\ns_lshl_b32 s{sT}, s{sT}, 12\ns_add_u32 s{sT}, s{sT}, {L_TBL_ADD[0]}")
    for k in range(8): e(f"v_add_u32 v{84+k}, s{sT}, v{84+k}")
    for ks in range(16):
        e(f"WAITLG kb{ks}")
        e(f"v_mfma_f32_32x32x16_bf16 v[64:79], {vr(96+8*ks,4)}, {vr(100+8*ks,4)}, {'0' if ks==0 else 'v[64:79]'}")
    snd = e.lab('snd1'); snd2 = e.lab('snd2')
    e(f"s_xor_b32 s{sT+2}, s{sW}, 1\ns_lshl_b32 s{sT+2}, s{sT+2}, 11\nv_add_u32 v4, s{sT+2}, v2\ns_lshl_b32 s{sT+2}, s{sW}, 11\nv_add_u32 v5, s{sT+2}, v2")
    e(f"s_cmp_eq_u32 s{sT+1}, 0\ns_cbranch_scc0 {snd}")
    e(f"CONDB\nds_write_b128 v4, v[72:75] offset:{L_KX}\nds_write_b128 v4, v[76:79] offset:{L_KX+1024}\nCONDE")
    e(f"s_branch {snd2}")
    e(f"{snd}:")
    e(f"CONDB\nds_write_b128 v4, v[64:67] offset:{L_KX}\nds_write_b128 v4, v[68:71] offset:{L_KX+1024}\nCONDE")
    for r in range(8): e(f"v_mov_b32 v{64+r}, v{72+r}")
    e(f"{snd2}:")
    e("s_waitcnt lgkmcnt(0)\ns_barrier")
    e(f"ds_read_b128 v[72:75], v5 offset:{L_KX}\nds_read_b128 v[76:79], v5 offset:{L_KX+1024}")
    e(poll8_issue(e, F_S1B, 's1b'))
    e(f"v_mov_b32 v92, s{sT}\nv_mov_b32 v93, 0")
    e("s_waitcnt lgkmcnt(0)")
    for k in range(8): e(f"v_add_f32 v{64+k}, v{64+k}, v{72+k}")
    for k in range(4): e(f"v_cvt_pk_bf16_f32 v{64+k}, v{64+2*k}, v{65+2*k}")
    for k in range(4): e(f"ds_write_b16 v{84+2*k}, v{64+k}\nds_write_b16_d16_hi v{85+2*k}, v{64+k}")
    e(f"ds_write_b16 v92, v93 offset:{2*TB0}")
    e(f"v_lshrrev_b32 v4, 7, v0\nv_and_b32 v5, 127, v0\nv_lshlrev_b32 v6, 12, v4\nv_add_u32 v6, {L_TBL_ADD[0]}, v6")
    e(f"v_mul_u32_u24 v7, {KPC}, v4\nv_lshlrev_b32 v8, 4, v5\nv_add_u32 v7, v7, v8")
    e("v_lshlrev_b32 v8, 3, v5\nv_sub_u32 v8, 2047, v8\nv_cvt_f32_u32 v8, v8")
    for oc in range(2):
        F = 96 + 16*oc
        if oc == 1: e(f"v_subrev_f32 v8, {hex(f2u(1024.0))}, v8")
        e(f"v_mov_b32 v{F}, v8")
        for k in range(1, 10): e(f"v_add_f32 v{F+k}, -1.0, v{F+k-1}")
        if oc == 1:
            e("v_mov_b32 v77, 0x3e800000")
            for k in (7, 8, 9): e(f"v_fma_f32 v76, v{F+k}, v77, 0.5\nv_max_f32 v{F+k}, v{F+k}, v76")
            e(f"v_max_f32 v{F+9}, 0.5, v{F+9}")
        for k in range(5): e(f"v_cvt_pk_bf16_f32 v{F+2*k}, v{F+2*k}, v{F+2*k+1}")
        for k in range(5): e(f"v_lshrrev_b32 v{F+2*k+1}, 15, v{F+2*k}\nv_lshlrev_b16 v{F+2*k}, 1, v{F+2*k}")
        for k in range(9): e(f"v_add_u32 v{F+k}, v6, v{F+k}")
    e("s_waitcnt lgkmcnt(0)\ns_barrier")
    e.stamp('kg2a')
    for oc in range(2):
        F = 96 + 16*oc; V = 128 + 10*oc
        for k in range(9): e(f"ds_read_u16 v{V+k}, v{F+k}")
    e("s_waitcnt lgkmcnt(0)")
    for oc in range(2):
        V = 128 + 10*oc; Ereg = 96 + 8*oc; O = Ereg + 4
        for k in range(4): e(f"v_lshl_or_b32 v{Ereg+k}, v{V+2*k+1}, 16, v{V+2*k}\nv_lshl_or_b32 v{O+k}, v{V+2*k+2}, 16, v{V+2*k+1}")
        e(f"ds_write_b128 v7, {vr(Ereg,4)} offset:{L_KP + 2048*oc}\nds_write_b128 v7, {vr(O,4)} offset:{L_KP + KPO + 2048*oc}")
    e(f"v_and_b32 v4, 1, v0\nv_lshlrev_b32 v4, 4, v4\nv_bfe_u32 v5, v0, 1, 1\nv_mul_u32_u24 v5, {KPO}, v5\nv_bfe_u32 v6, v0, 2, 1\nv_mul_u32_u24 v6, {KPC}, v6\nv_add3_u32 v4, v4, v5, v6")
    e("v_mov_b32 v64, 0\nv_mov_b32 v65, 0\nv_mov_b32 v66, 0\nv_mov_b32 v67, 0")
    e(f"ds_write_b128 v4, v[64:67] offset:{L_KP + 4096}")
    e(f"v_and_b32 v8, 31, v0\nv_min_u32 v8, 29, v8\nv_lshlrev_b32 v8, 4, v8\nv_bfe_u32 v9, v0, 5, 1\nv_mul_u32_u24 v9, {UC}, v9\nv_add_u32 v8, v8, v9")
    e(f"ds_write_b128 v8, v[64:67] offset:{L_U}")
    e(poll8_check(e, 's1b', 28, barrier=False))
    e("s_waitcnt lgkmcnt(0)\ns_barrier")
    e.stamp('kg2b')

vXR = 44
vSR = 48
vXB = 56
def xa_loads():
    return split(f"""v_add_u32 v4, s{sXIN}, v{vXA}
    v_add_u32 v5, s{sSTOFF}, v{vSTA}
    global_load_dwordx2 {vr(vXR,2)}, v4, {sp(pWS)} sc1 @@xa
    global_load_dwordx2 {vr(vXR+2,2)}, v4, {sp(pWS)} offset:64 sc1 @@xa
    global_load_dwordx4 {vr(vSR,4)}, v5, {sp(pWS)} sc1 @@xa
    global_load_dwordx4 {vr(vSR+4,4)}, v5, {sp(pWS)} offset:16 sc1 @@xa""")

def st_loads(half):
    return split(f"""v_add_u32 v5, {WS_ST1 + 8192*half}, v{vSTA}
    global_load_dwordx4 {vr(vSR,4)}, v5, {sp(pWS)} sc1 @@{'xb' if half else 'xa'}
    global_load_dwordx4 {vr(vSR+4,4)}, v5, {sp(pWS)} offset:16 sc1 @@{'xb' if half else 'xa'}""")

vEPS = 41
vP0, vP1 = 42, 43
ACC_C = 96
def BF(tp, q): return 128 + 4*(4*(tp & 3) + q)
def AF(ch, q): return 192 + 4*(4*ch + q)
def la(ch, q, dst, isa=False):
    k = (7 - ch)//2; par = (7 - ch) % 2
    od = 128*par + 16*(3 - q)
    f = ar if isa else vr
    return [f"ds_read2_b32 {f(dst,2)}, v{vKA+k} offset0:{od} offset1:{od+1} @@af{ch}_{q}", f"ds_read2_b32 {f(dst+2,2)}, v{vKA+k} offset0:{od+2} offset1:{od+3} @@af{ch}_{q}"]
def lb(tp, q):
    return [f"ds_read_b128 {vr(BF(tp,q),4)}, v{vUB} offset:{512*tp + 64*(3-q)} @@bf{tp}_{q}"]
def a_preload():
    L = []
    for q in range(4):
        for ch in range(4): L.append(la(ch, q, AF(ch, q)))
    return L
def w1_load(n):
    L = []
    g = n // 8
    return (g, f"global_load_dwordx4 {ar(4*n,4)}, v{{A}}, {sp(pWS)} offset:{1024*(n%8) - 4096} sc1 @@w1_{n}")
class Stream:
    def __init__(self, areg, sbase, pat, tag):
        self.areg = areg; self.sbase = sbase; self.pat = pat; self.tag = tag; self.g = None
    def load(self, n, dst):
        L = []
        g = n // 8
        if self.g is None:
            L += [f"s_add_u32 s{sT+5}, s{self.sbase}, {4096 + 8192*g}", f"v_add_u32 v{self.areg}, s{sT+5}, v{self.pat}"]
        elif g != self.g:
            L += [f"v_add_u32 v{self.areg}, {8192*(g - self.g)}, v{self.areg}"]
        self.g = g
        L.append(f"global_load_dwordx4 {dst}, v{self.areg}, {sp(pWS)} offset:{1024*(n%8) - 4096} sc1 @@{self.tag}{n}")
        return L

def pro_half(half, T=64):
    G_ = []
    for k in range(4):
        S = vSR + 2*k
        G_ += [[f"v_mul_f32 v{S}, s{sC}, v{S}"], [f"v_fma_f32 v{S+1}, v{S+1}, s{sC}, v{vEPS}"], [f"v_fma_f32 v{S+1}, -v{S}, v{S}, v{S+1}"], [f"v_rsq_f32 v{S+1}, v{S+1}"]]
    xf = T; uf = T + 8; pk = T + 16
    for c in range(2):
        for k in range(4):
            x = vXR + 2*c + k//2
            G_.append([f"v_lshlrev_b32 v{xf+4*c+k}, 16, v{x}" if k % 2 == 0 else f"v_and_b32 v{xf+4*c+k}, 0xffff0000, v{x}"])
    for k in range(4):
        S = vSR + 2*k
        G_.append([f"v_mul_f32 v{S}, v{S}, v{S+1}"])
    for c in range(2):
        for k in range(4):
            S = vSR + 2*k
            G_.append([f"v_fma_f32 v{uf+4*c+k}, v{xf+4*c+k}, v{S+1}, -v{S}"])
    for c in range(2):
        for h in range(2): G_.append([f"v_cvt_pk_bf16_f32 v{pk+2*c+h}, v{uf+4*c+2*h}, v{uf+4*c+2*h+1}"])
    for c in range(2):
        G_.append([f"ds_write_b64 v{vUW}, {vr(pk+2*c,2)} offset:{UC*c + 2048*half}"])
    for c in range(2):
        for k in range(4):
            p = pk + 2*c + k//2
            G_.append([f"v_lshlrev_b32 v{uf+4*c+k}, 16, v{p}" if k % 2 == 0 else f"v_and_b32 v{uf+4*c+k}, 0xffff0000, v{p}"])
    for c in range(2):
        for k in range(4): G_.append([f"v_fmac_f32 v{xf+4*c+k}, v{uf+4*c+k}, v{vDS+c}"])
        G_.append([f"ds_write_b128 v{vBW}, {vr(xf+4*c,4)} offset:{8192*c + 4096*half}"])
    return G_

def epi_writes(half):
    return [[f"ds_write_b128 v{vYW}, {vr(ACC_C + 4*(4*half+T),4)} offset:{16384*half + 1024*T}"] for T in range(4)]
def epi_reads(half, R=64):
    G_ = []
    for Tp in range(2):
        G_.append([f"ds_read_b128 {vr(R+12*Tp,4)}, v{vYR} offset:{16384*half + 1024*Tp} @@er{half}"])
        G_.append([f"ds_read_b128 {vr(R+12*Tp+4,4)}, v{vYR} offset:{16384*half + 1024*Tp + 4096} @@er{half}"])
        G_.append([f"ds_read_b128 {vr(R+12*Tp+8,4)}, v{vBR} offset:{4096*half + 1024*Tp} @@er{half}"])
    return G_
def epi_fin(half, R=64):
    G_ = []
    G_.append([f"s_add_u32 s{sT+5}, s{sXMID}, {32*XT*half}", f"v_add_u32 v4, s{sT+5}, v{vYST}"])
    G_.append([f"v_add_u32 v5, {8*XT}, v4"])
    G_.append([f"WAITLG er{half}"])
    for Tp in range(2):
        b = R + 12*Tp
        for r in range(4): G_.append([f"v_add_f32 v{b+r}, v{b+r}, v{b+4+r}"])
        for r in range(4): G_.append([f"v_add_f32 v{b+r}, v{b+r}, v{b+8+r}"])
        for h in range(2): G_.append([f"v_cvt_pk_bf16_f32 v{R+24+2*Tp+h}, v{b+2*h}, v{b+2*h+1}"])
        G_.append([f"global_store_dwordx2 v{4+Tp}, {vr(R+24+2*Tp,2)}, {sp(pWS)} sc1 @@es{half}"])
    return G_

def signal8(e, foff):
    sk = e.lab('sg')
    return split(f"""s_cmp_lg_u32 s{sW}, 0
    s_cbranch_scc1 {sk}
    s_add_u32 s{sT+5}, s{sFL}, {foff}
    v_add_u32 v9, s{sT+5}, v{vSIG}
    s_mov_b64 exec, 0xff
    CONDB
    global_atomic_add v9, v{vONE}, {sp(pWS)} sc1
    CONDE
    s_mov_b64 exec, -1
    {sk}:""")
def poll8_issue(e, foff, tag, sfl=None, va=None, vv=None):
    va = va or vP1; vv = vv or vP0
    return w0(e, split(f"""s_add_u32 s{sT+5}, s{sfl or sFL}, {foff}
    v_add_u32 v{va}, s{sT+5}, v{vPOL}
    global_load_dword v{vv}, v{va}, {sp(pWS)} sc1 @@{tag}"""))
def poll_check(e, tag, tgt, va=None, vv=None, barrier=True):
    va = va or vP1; vv = vv or vP0
    chk = [f"v_cmp_gt_u32 vcc, {tgt}, v{vv}"]
    return w0(e, [f"WAITVM {tag}"] + slow_poll(e, chk, [f"global_load_dword v{vv}, v{va}, {sp(pWS)} sc1"], tag)) + (["s_barrier"] if barrier else [])
poll8_check = poll_check

def tile_dma(p, areg):
    G_ = []
    G_.append([f"s_add_u32 s{sT+5}, s{sGRP}, {16*p}", f"s_mul_i32 s{sT+5}, s{sT+5}, {XT}", f"s_add_u32 s{sT+5}, s{sT+5}, s{sXMID}", f"v_add_u32 v{areg}, s{sT+5}, v{vTD}"])
    for k in range(7):
        L = []
        if k == 0: L += [f"s_add_u32 m0, s{sW7}, {L_XT + p*XT}", "s_nop 0"]
        if k == 4: L += [f"v_add_u32 v{areg}, 4096, v{areg}", f"s_add_u32 m0, s{sW7}, {L_XT + p*XT + 4096}", "s_nop 0"]
        L.append(f"global_load_lds_dwordx4 v{areg}, {sp(pWS)} offset:{1024*(k%4)} sc1 @@tile{p}")
        G_.append(L)
    return G_

def mfma16(T, a, b, first):
    acc = vr(ACC_C + 4*T, 4)
    return f"v_mfma_f32_16x16x32_bf16 {acc}, {a}, {b}, {'0' if first else acc}"

def interleave(groups, extra, every):
    out = []; extra = list(extra)
    for k, g in enumerate(groups):
        out.append(g)
        if (k + 1) % every == 0 and extra: out.append(extra.pop(0))
    return out + extra

def conv(e, W1):
    o = e.opt
    e(f"s_mov_b32 s{sC}, {hex(f2u(1.0/448))}\ns_mov_b32 s{sC+1}, {hex(f2u(-1.4426950408889634))}\nv_mov_b32 v{vEPS}, {hex(f2u(1e-5))}")
    w1q = list(range(56))
    def w1n(k):
        out = []
        for _ in range(k):
            if w1q:
                n = w1q.pop(0); out.append(W1.load(n, ar(4*n, 4)))
        return out
    for g in w1n(o.w1_a): e(g)
    e("WAITVM xa")
    for g in interleave(pro_half(0), w1n(o.w1_b), 16): e(g)
    e.stamp('proA')
    e("WAITVM xs1? at1?\ns_waitcnt lgkmcnt(0)\ns_barrier")
    sk = e.lab('cyb')
    e(f"s_cmp_eq_u32 s{sLAYER}, 0\ns_cbranch_scc1 {sk}")
    e("CONDB"); e(signal8(e, F_CYB - 0xA000)); e("CONDE")
    e(f"{sk}:")
    for q in range(4):
        for tp in range(4): e(lb(tp, q))
    first = set()
    anchors = []
    for q in range(4):
        for tp in range(4):
            for ch in range(4 - tp):
                T = tp + ch
                pre = [f"WAITLG bf{tp}_{q} af{ch}_{q}"]
                anchors.append(pre + [mfma16(T, vr(AF(ch, q), 4), vr(BF(tp, q), 4), T not in first)]); first.add(T)
    items = []
    ring = {}
    rl = [(ch, q) for ch in range(4, 8) for q in range(4)]
    for k in range(8):
        ring[rl[k]] = k
        items.append((6 + 3*k, la(rl[k][0], rl[k][1], 224 + 4*k, True)))
    items += spread(w1n(9), 2, 39)
    e(weave(anchors, items, 8))
    e.stamp('A1')
    xb = split(f"""s_add_u32 s{sT+5}, s{sXIN}, {32*XT}
    v_add_u32 v6, s{sT+5}, v{vXA}
    s_add_u32 s{sT+5}, s{sSTOFF}, 8192
    v_add_u32 v7, s{sT+5}, v{vSTA}
    global_load_dwordx2 {vr(vXR,2)}, v6, {sp(pWS)} sc1 @@xb
    global_load_dwordx2 {vr(vXR+2,2)}, v6, {sp(pWS)} offset:64 sc1 @@xb
    global_load_dwordx4 {vr(vSR,4)}, v7, {sp(pWS)} sc1 @@xb
    global_load_dwordx4 {vr(vSR+4,4)}, v7, {sp(pWS)} offset:16 sc1 @@xb""")
    anchors = []
    seq = [(tp, ch, q) for q in range(4) for tp in range(1, 4) for ch in range(1, 4) if tp + ch >= 4]
    seq += [(tp, ch, q) for (ch, q) in rl for tp in range(0, 8 - ch) if tp <= 3]
    lastuse = {}
    for idx, (tp, ch, q) in enumerate(seq):
        lastuse[(ch, q)] = idx
    items = []
    nxt = 8
    for idx, (tp, ch, q) in enumerate(seq):
        T = tp + ch
        pre = []
        if ch >= 4:
            assert (ch, q) in ring, (ch, q)
            a = ar(224 + 4*ring[(ch, q)], 4)
            pre = [f"WAITLG af{ch}_{q}"]
        else: a = vr(AF(ch, q), 4)
        anchors.append(pre + [mfma16(T, a, vr(BF(tp, q), 4), T not in first)]); first.add(T)
        if ch >= 4 and lastuse[(ch, q)] == idx and nxt < 16:
            slot = ring[(ch, q)]; ring[rl[nxt]] = slot
            items.append((idx + 1, la(rl[nxt][0], rl[nxt][1], 224 + 4*slot, True), 'hard')); nxt += 1
    assert len(anchors) == 64
    items += spread(epi_writes(0), 0, 3)
    items.append((4, ["s_waitcnt lgkmcnt(0)", "s_barrier"], 'hard'))
    items += spread(epi_reads(0), 5, 8)
    items += spread(epi_fin(0), 10, 22)
    items.append((o.pb_pos, poll8_issue(e, F_CYB - 0xA000, 'pB'), 'hard'))
    items.append((o.pb_chk, poll8_check(e, 'pB', f"s{sTGT}") + xb, 'hard'))
    items += [(p_, g, 'hard') for p_, g in spread(w1n(10), 26, 64)]
    e(weave(anchors, items, 8))
    e.stamp('A2')
    e("WAITVM es0\ns_barrier")
    e(signal8(e, F_CXA))
    for g in w1n(o.w1_c): e(g)
    e("WAITVM xb")
    e.stamp('xb')
    for g in interleave(pro_half(1), w1n(o.w1_b), 16): e(g)
    e("s_waitcnt lgkmcnt(0)\ns_barrier")
    e.stamp('proB')
    for q in range(4):
        for tp in range(4, 8): e(lb(tp, q))
    anchors = []
    for q in range(4):
        for tp in range(4, 8):
            for ch in range(8 - tp):
                T = tp + ch
                pre = [f"WAITLG bf{tp}_{q}"] if ch == 0 else []
                anchors.append(pre + [mfma16(T, vr(AF(ch, q), 4), vr(BF(tp, q), 4), False)])
    items = spread(w1n(o.w1_d), 1, 38)
    items.append((o.pxa_pos, poll8_issue(e, F_CXA, 'pXA'), 'hard'))
    e(weave(anchors, items, 8))
    e.stamp('B')
    for g in epi_writes(1): e(g)
    e(poll8_check(e, 'pXA', 28, barrier=False))
    e("s_waitcnt lgkmcnt(0)\ns_barrier")
    e.stamp('pXA')
    for g in tile_dma(0, 6): e(g)
    for g in epi_reads(1): e(g)
    for g in epi_fin(1): e(g)
    e.stamp('epiB')
    return w1q

ACC = [64, 96]
vTR2 = 44
vS2 = [46, 48]
vSA = 50
vHA = 51
vRWa = 52
vRESa, vRESb = 56, 60
def WDdst(idx):
    if idx < 8: return ar(224 + 4*idx, 4)
    if idx < 34: return vr(152 + 4*(idx - 8), 4)
    return ar(4*(idx - 34), 4)
def Hdst(k): return ar(88 + 4*k, 4)

def g1_epilogue(p):
    A = ACC[p % 2]; c1, c2 = vS2[p % 2], vS2[p % 2] + 1
    G_ = []
    for r0 in range(0, 16, 2):
        rs = (r0, r0 + 1)
        for r in rs: G_.append([f"v_mul_f32 v{A+r}, v{c1}, v{A+r}"])
        for r in rs: G_.append([f"v_exp_f32 v{A+r}, v{A+r}"])
        for r in rs: G_.append([f"v_fma_f32 v{A+r}, v{A+r}, v{c2}, v{c2}"])
        for r in rs: G_.append([f"v_rcp_f32 v{A+r}, v{A+r}"])
        for r in rs: G_.append([f"v_mul_f32 v{A+r}, v{A+r}, v{A+16+r}"])
        G_.append([f"v_cvt_pk_bf16_f32 v{A+16+r0//2}, v{A+r0}, v{A+r0+1}"])
        if r0 == 6: G_.append([f"global_store_dwordx4 v{vHA}, {vr(A+16,4)}, {sp(pWS)} sc1 @@hs{p}"])
    G_.append([f"global_store_dwordx4 v{vHA}, {vr(A+20,4)}, {sp(pWS)} offset:1024 sc1 @@hs{p}"])
    return G_

def stats_block(e, p):
    R = 64
    SX = L_SX + 1024*(p & 1)
    L = []
    L += [f"s_add_u32 s{sT+5}, s{sW7}, {p*XT}", f"v_add_u32 v4, s{sT+5}, v{vTR}"]
    for k in range(7):
        L += [f"ds_read_b64_tr_b16 {vr(R+4*k,2)}, v4 offset:{1024*k}", f"ds_read_b64_tr_b16 {vr(R+4*k+2,2)}, v4 offset:{1024*k+256}"]
    L += ["v_mov_b32 v5, 0", "v_mov_b32 v6, 0", f"v_lshlrev_b32 v7, 2, v1", f"s_lshl_b32 s{sT+5}, s{sW}, 8", f"v_add_u32 v9, s{sT+5}, v7", "s_waitcnt lgkmcnt(0)"]
    for k in range(28): L += [f"v_dot2_f32_bf16 v5, v{R+k}, s{sONES}, v5", f"v_dot2_f32_bf16 v6, v{R+k}, v{R+k}, v6"]
    L += ["s_nop 2", "v_permlane32_swap_b32 v5, v6", "s_nop 1", "v_add_f32 v5, v5, v6"]
    L += [f"v_add_u32 v9, 131072, v9", f"v_add_u32 v7, 131072, v7", f"ds_write_b32 v9, v5 offset:{SX - 131072}", "s_waitcnt lgkmcnt(0)", "s_barrier"]
    o0 = (SX - 131072)//256
    L += [f"ds_read2st64_b32 v[{R}:{R+1}], v7 offset0:{o0} offset1:{o0+1}", f"ds_read2st64_b32 v[{R+2}:{R+3}], v7 offset0:{o0+2} offset1:{o0+3}"]
    L += [f"s_add_u32 s{sT+5}, s{sGRP}, {16*p}", f"s_lshl_b32 s{sT+5}, s{sT+5}, 8", f"s_add_u32 s{sT+5}, s{sT+5}, s{sST2}", f"v_add_u32 v9, s{sT+5}, v{vL8}", "s_waitcnt lgkmcnt(0)"]
    L += [f"v_add_f32 v{R}, v{R}, v{R+1}", f"v_add_f32 v{R+2}, v{R+2}, v{R+3}", f"v_add_f32 v{R}, v{R}, v{R+2}", f"v_mov_b32 v{R+1}, v{R}", "s_nop 1", f"v_permlane32_swap_b32 v{R}, v{R+1}"]
    L += [f"v_mul_f32 v{R}, s{sC}, v{R}", f"v_fma_f32 v{R+1}, v{R+1}, s{sC}, v{vEPS}", f"v_fma_f32 v{R+1}, -v{R}, v{R}, v{R+1}", f"v_rsq_f32 v{R+2}, v{R+1}", f"v_sqrt_f32 v{R+3}, v{R+1}",
          f"v_mul_f32 v{R+2}, s{sC+1}, v{R+2}"]
    L += w0(e, ["s_mov_b32 exec_hi, 0", f"global_store_dwordx2 v9, v[{R+2}:{R+3}], {sp(pWS)} sc1", "s_mov_b32 exec_hi, -1"])
    return L

def blocking_poll(e, va, vv, base, tgt, name):
    ld = f"global_load_dword v{vv}, v{va}, {sp(base)} sc1"
    return w0(e, [ld, "s_waitcnt vmcnt(0)"] + slow_poll(e, [f"v_cmp_gt_u32 vcc, {tgt}, v{vv}"], [ld], name)) + ["s_barrier"]

def helper(e):
    e("L_helper:")
    e(f"s_sub_u32 s{sGRP}, s2, {NWG}\ns_mul_i32 s{sW7}, s{sW}, 7168")
    e(f"s_mov_b32 s{sC}, {hex(f2u(1.0/448))}\ns_mov_b32 s{sC+1}, {hex(f2u(-1.4426950408889634))}")
    e(blocking_poll(e, 41, 42, pDBG, 16, 'hs1'))
    e(f"v_mov_b32 v{vEPS}, {hex(f2u(1e-5))}")
    e("L_hloop:")
    for half in range(2):
        e(f"s_add_u32 s{sT+5}, s{sFL}, {F_CXB if half else F_CXA}\nv_add_u32 v{vP1}, s{sT+5}, v{vPOL}")
        e(blocking_poll(e, vP1, vP0, pWS, 28, f'hx{half}'))
        for g in tile_dma(2*half, 6): e(g)
        for g in tile_dma(2*half + 1, 7): e(g)
        e("s_waitcnt vmcnt(7)\ns_barrier")
        e(stats_block(e, 2*half))
        e("s_waitcnt vmcnt(0)\ns_barrier")
        e(stats_block(e, 2*half + 1))
    e(f"s_cmp_lg_u32 s{sLAYER}, 0\ns_cbranch_scc1 L_hdone")
    e(f"s_mov_b32 s{sLAYER}, 1\ns_mov_b32 s{sXMID}, {WS_X[3]}\ns_mov_b32 s{sFL}, {WS_FL[1]}\ns_mov_b32 s{sST2}, {WS_ST2[1]}")
    e("s_branch L_hloop")
    e("L_hdone:")
    e.end()

def ch_signal(e, p):
    sk = e.lab('chs')
    return split(f"""s_cmp_lg_u32 s{sW}, 0
    s_cbranch_scc1 {sk}
    s_add_u32 s{sT+5}, s{sCH}, {128*p}
    v_mov_b32 v9, s{sT+5}
    s_mov_b64 exec, 1
    CONDB
    global_atomic_add v9, v{vONE}, {sp(pWS)} sc1
    CONDE
    s_mov_b64 exec, -1
    {sk}:""")
def ch_issue(e, add, tag):
    return w0(e, split(f"""s_lshl_b32 s{sT+5}, s{sPP}, 7
    s_add_u32 s{sT+5}, s{sT+5}, s{sCH}
    s_add_u32 s{sT+5}, s{sT+5}, {128*add}
    v_mov_b32 v{vP1}, s{sT+5}
    global_load_dword v{vP0}, v{vP1}, {sp(pWS)} sc1 @@{tag}"""))

def g2_epilogue(e, sub):
    A = ACC[sub]; RS = vRESa if sub == 0 else vRESb
    L = []
    for s_ in range(3):
        L += [f"ds_read_b128 {vr(128+8*s_,4)}, v{vRR} offset:{sub*XT + s_*2048} @@rr{sub}", f"ds_read_b128 {vr(132+8*s_,4)}, v{vRR} offset:{sub*XT + s_*2048 + 1024} @@rr{sub}"]
    for r in range(8):
        x = RS + r//2
        L += [f"v_lshlrev_b32 v4, 16, v{x}" if r % 2 == 0 else f"v_and_b32 v4, 0xffff0000, v{x}", f"v_add_f32 v{A+r}, v{A+r}, v4"]
    L.append(f"WAITLG rr{sub}")
    for r in range(8): L.append(f"v_add_f32 v{128+r}, v{128+r}, v{136+r}")
    for r in range(8): L.append(f"v_add_f32 v{A+r}, v{A+r}, v{144+r}")
    for r in range(8): L.append(f"v_add_f32 v{A+r}, v{A+r}, v{128+r}")
    P = A + 8
    for k in range(4): L.append(f"v_cvt_pk_bf16_f32 v{P+k}, v{A+2*k}, v{A+2*k+1}")
    fin = e.lab('fin'); jn = e.lab('g2j')
    L += [f"s_cmp_lg_u32 s{sLAYER}, 0", f"s_cbranch_scc1 {fin}", "CONDB L0"]
    L += [f"ds_write_b64 v{vOTW}, {vr(P,2)}", f"ds_write_b64 v{vOTW}, {vr(P+2,2)} offset:16"]
    L += ["v_mov_b32 v4, 0", "v_mov_b32 v5, 0"]
    for k in range(4): L.append(f"v_dot2_f32_bf16 v4, v{P+k}, s{sONES}, v4")
    for k in range(4): L.append(f"v_dot2_f32_bf16 v5, v{P+k}, v{P+k}, v5")
    L += [f"s_add_u32 s{sT+5}, s{sXOUT}, {32*XT*sub}", f"v_add_u32 v6, s{sT+5}, v{vXST}", f"v_add_u32 v7, {32*256*sub}, v{vSTAT}"]
    L += ["s_waitcnt lgkmcnt(0)", f"ds_read_b64_tr_b16 {vr(P+4,2)}, v{vOTR}", f"ds_read_b64_tr_b16 {vr(P+6,2)}, v{vOTR} offset:128"]
    L += ["v_permlane32_swap_b32 v4, v5", "s_nop 1", "v_add_f32 v4, v4, v5"]
    L += [f"global_atomic_add_f32 v7, v4, {sp(pWS)} sc1 @@at{sub}"]
    L += ["s_waitcnt lgkmcnt(0)", f"global_store_dwordx4 v6, {vr(P+4,4)}, {sp(pWS)} sc1 @@xs{sub}", f"s_branch {jn}", "CONDE", f"{fin}:", "CONDB"]
    L += [f"v_add_u32 v6, {1024*896*sub}, v{vOST}", f"v_permlane32_swap_b32 v{P}, v{P+2}", f"v_permlane32_swap_b32 v{P+1}, v{P+3}"]
    L += [f"global_store_dwordx4 v6, {vr(P,4)}, {sp(pOUT)}", "CONDE", f"{jn}:"]
    return L

sRW = 16
def reduce_writes(sub):
    A = ACC[sub]; L = []
    for pi in range(1, 4): L.append(f"v_add_u32 v{3+pi}, s{sRW+pi-1}, v{vL16}")
    for pi in range(1, 4):
        L += [f"ds_write_b128 v{3+pi}, {vr(A+8*pi,4)} offset:{sub*XT}", f"ds_write_b128 v{3+pi}, {vr(A+8*pi+4,4)} offset:{sub*XT + 1024}"]
    return L

def edf(loads, t0, t1, pace):
    items = []; t = t0; rem = list(loads)
    while rem:
        av = [x for x in rem if x['early'] <= t]
        heads = {}
        for x in rem:
            if x['st'] not in heads: heads[x['st']] = x
        av = [x for x in av if heads[x['st']] is x]
        if not av:
            t += 0.5; continue
        x = min(av, key=lambda y: y['dead'])
        items.append((t, x['gen'](), 'hard')); rem.remove(x); x['t'] = t
        t += pace
    return items

def gemms(e, w1left, W1):
    o = e.opt
    WD = Stream(8, sWDB, vL16, 'wd')
    WDl = Stream(10 if False else 45, sWDB, vL16, 'wd')
    WD.areg = 55
    HAs = Stream(6, sHA, vHL, 'ha')
    RA = 4
    def pos(p, i, u=0): return 2*(28*p + i) + u
    def bslot(K): return 128 + 4*(K % 6)
    def bload(K):
        p, i = divmod(K, 28)
        a = vTR if p < 2 else vTR2; off = (p % 2)*XT + 1024*i
        r = bslot(K)
        return [f"ds_read_b64_tr_b16 {vr(r,2)}, v{a} offset:{off} @@b{K}", f"ds_read_b64_tr_b16 {vr(r+2,2)}, v{a} offset:{off+256} @@b{K}"]
    e(f"v_add_u32 v{vTR2}, {2*XT}, v{vTR}")
    e(f"s_lshl_b32 s{sCH}, s{sGRP}, 9\ns_add_u32 s{sCH}, s{sCH}, s{sFL}\ns_add_u32 s{sCH}, s{sCH}, {F_CH}")
    e(f"s_lshl_b32 s{sT}, s{sPP}, 4\ns_add_u32 s{sT}, s{sT}, s{sGRP}\ns_mul_i32 s{sHA}, s{sT}, {HT}\ns_add_u32 s{sHA}, s{sHA}, s{sHOFF}\ns_add_u32 s{sHB}, s{sHA}, {32*HT}")
    e("WAITVM tile0\ns_barrier")
    e.stamp('SP0')
    for K in range(RA): e(bload(K))
    anchors = []; items = []
    for p in range(4):
        A = ACC[p % 2]
        for i in range(28):
            K = 28*p + i; r = bslot(K)
            for u in range(2):
                pre = [f"WAITLG b{K}"] if u == 0 else []
                if p == 0: pre.append(f"WAITVM w1_{2*i+u}")
                acc = vr(A + 16*u, 16)
                anchors.append(pre + [f"v_mfma_f32_32x32x16_bf16 {acc}, {ar(8*i+4*u,4)}, {vr(r,4)}, {'0' if i == 0 else acc}"])
            if K + RA < 112: items.append((pos(p, i, 1), bload(K + RA), 'hard'))
        st2a = [f"s_add_u32 s{sT+5}, s{sGRP}, {16*p}", f"s_lshl_b32 s{sT+5}, s{sT+5}, 8", f"s_add_u32 s{sT+5}, s{sT+5}, s{sST2}", f"v_add_u32 v{vSA}, s{sT+5}, v{vL8}"]
        ld = f"global_load_dwordx2 {vr(vS2[p%2],2)}, v{vSA}, {sp(pWS)} sc1"
        items.append((pos(p, o.s2_k[p]), st2a + [ld + f" @@s2_{p}"], 'hard'))
        chk = [f"v_cmp_eq_u32 vcc, 0, v{vS2[p%2]+1}"]
        items.append((pos(p, 28) - 0.5, [f"WAITVM s2_{p}"] + slow_poll(e, chk, [ld], f's2{p}') +
                      [f"s_add_u32 s{sT+5}, s{sGRP}, {16*p}", f"s_mul_i32 s{sT+5}, s{sT+5}, {HT}", f"s_add_u32 s{sT+5}, s{sT+5}, s{sHOFF}", f"v_add_u32 v{vHA}, s{sT+5}, v{vHS}"], 'hard'))
        el = o.epi_len if p < 3 else o.epi3_len
        items += spread(g1_epilogue(p), pos(p + 1, 0) + 3, pos(p + 1, el))
        w = []
        if p >= 1: w.append(f"hs{p-1}")
        if p < 3: w.append(f"tile{p+1}")
        sp_ = ["WAITVM " + " ".join(w), "s_barrier"]
        if p >= 1: sp_ += ch_signal(e, p - 1)
        items.append((pos(p, 24) - 0.5, sp_, 'hard'))
    items.append((pos(0, o.cxb_k), ["WAITVM es1", "s_barrier"] + signal8(e, F_CXB), 'hard'))
    items.append((pos(1, o.pxb_k) - 22, poll8_issue(e, F_CXB, 'pXB'), 'hard'))
    items.append((pos(1, o.pxb_k), poll8_check(e, 'pXB', 28), 'hard'))
    loads = []
    def add(st, early, dead, gen): loads.append(dict(st=st, early=early, dead=dead, gen=gen))
    for k, g in enumerate(tile_dma(1, 7)[1:]):
        add('t1', 0, pos(0, 24) - 28 - 12 + k, (lambda g=g: g))
    t1 = tile_dma(1, 7); t2 = tile_dma(2, 7); t3 = tile_dma(3, 7)
    loads.clear()
    def addtile(st, T_, early, dl):
        for k in range(7):
            g = T_[k + 1] if k else T_[0] + T_[1]
            add(st, early, dl - 14 + 2*k, (lambda g=g: g))
    addtile('t', t1, 0, pos(0, 24) - 28)
    addtile('t', t2, pos(1, o.pxb_k) + 0.1, pos(1, 24) - 28)
    addtile('t', t3, pos(1, o.pxb_k) + 0.1, pos(2, 24) - 28)
    for n in w1left:
        add('w1', 0, pos(0, n >> 1) - 28, (lambda n=n: W1.load(n, ar(4*n, 4))))
    for idx in range(34):
        add('wd', 0, pos(3, 0) + idx, (lambda idx=idx: WD.load(idx, WDdst(idx))))
    for idx in range(34, 56):
        add('wdl', pos(3, (idx - 34) >> 1, 1) + 1, pos(4, idx >> 1) - 28, (lambda idx=idx: WDl.load(idx, WDdst(idx))))
    for k in range(28):
        add('ha', max(pos(3, o.cha_k) + 0.1, pos(3, (22 + k) >> 1, 1) + 1), pos(4, k) - 28, (lambda k=k: HAs.load(k, Hdst(k))))
    loads[:] = [x for x in loads if x['st'] not in o.skip.split(',')]
    items += edf(loads, 1.0, 0, o.pace)
    if o.verbose:
        for x in loads: print(x['st'], x['t'], 'dead', x['dead'], file=sys.stderr)
    items.append((pos(2, 10), [f"ds_read_b64_tr_b16 {vr(vRESa,2)}, v{vRES} @@resa", f"ds_read_b64_tr_b16 {vr(vRESa+2,2)}, v{vRES} offset:512 @@resa"]))
    items.append((pos(4, 4), [f"ds_read_b64_tr_b16 {vr(vRESb,2)}, v{vRES} offset:{2*XT} @@resb", f"ds_read_b64_tr_b16 {vr(vRESb+2,2)}, v{vRES} offset:{2*XT+512} @@resb"]))
    items.append((pos(3, o.cha_k) - 22, ch_issue(e, 0, 'pHa'), 'hard'))
    items.append((pos(3, o.cha_k), poll_check(e, 'pHa', 14), 'hard'))
    for k in range(28):
        for m in range(2):
            acc = vr(64 + 16*m, 16)
            anchors.append([f"WAITVM wd{2*k+m} ha{k}", f"v_mfma_f32_32x32x16_bf16 {acc}, {WDdst(2*k+m)}, {Hdst(k)}, {'0' if k == 0 else acc}"])
    items.append((pos(4, o.ch3_k), ["WAITVM hs3", "s_barrier"] + ch_signal(e, 3), 'hard'))
    if o.stamps:
        for p in range(1, 5): items.append((pos(p, 0) - 0.1, e.st(f'pass{p-1}'), 'hard'))
        if o.fine >= 0:
            for k in range(0, 29, 2): items.append((pos(o.fine, k) - 0.1, e.st(f'k{k}', True), 'hard'))
    e(weave(anchors, items, 24))
    e.stamp('G2a')
    e(reduce_writes(0))
    e(ch_issue(e, 2, 'pHb'))
    e("s_waitcnt lgkmcnt(0)\ns_barrier")
    e("WAITLG resa")
    e(g2_epilogue(e, 0))
    e.stamp('epi_a')
    e(poll_check(e, 'pHb', 14))
    e.stamp('pHb')
    HBs = Stream(6, sHB, vHL, 'hb')
    for k in range(o.hb_pre): e(HBs.load(k, Hdst(k)))
    e("WAITVM xs0 at0\ns_barrier")
    e(signal8(e, F_CYA))
    e.stamp('cya')
    anchors = []; items = []
    for k in range(28):
        for m in range(2):
            acc = vr(96 + 16*m, 16)
            anchors.append([f"WAITVM hb{k}", f"v_mfma_f32_32x32x16_bf16 {acc}, {WDdst(2*k+m)}, {Hdst(k)}, {'0' if k == 0 else acc}"])
    for k in range(o.hb_pre, 28):
        items.append((2*(k - o.hb_pre) + 0.5, HBs.load(k, Hdst(k)), 'hard'))
    items += spread(a_preload(), 2*17 + 1, 55)
    items.append((2*o.cya_k - o.cya_lead, poll8_issue(e, F_CYA, 'pYA'), 'hard'))
    sk = e.lab('nxa')
    items.append((2*o.cya_k, [f"s_cmp_lg_u32 s{sLAYER}, 0", f"s_cbranch_scc1 {sk}", "CONDB L0"] + e.st('pYA0') + poll8_check(e, 'pYA', 28) + e.st('pYA1') +
                  [f"s_mov_b32 s{sXIN}, s{sXOUT}", f"s_mov_b32 s{sSTOFF}, {WS_ST3}"] + xa_loads() + ["CONDE", f"{sk}:"], 'hard'))
    e(weave(anchors, items, 24))
    e.stamp('G2b')
    e(reduce_writes(1))
    e("s_waitcnt lgkmcnt(0)\ns_barrier")
    e("WAITLG resb")
    e(g2_epilogue(e, 1))
    e.stamp('epi_b')

def main():
    ap = argparse.ArgumentParser()
    ap.add_argument('-o', default='k.s')
    ap.add_argument('--stop', default='')
    ap.add_argument('--stamps', action='store_true')
    ap.add_argument('--rt', action='store_true')
    ap.add_argument('--epi_len', type=int, default=14)
    ap.add_argument('--epi3_len', type=int, default=10)
    ap.add_argument('--cha_k', type=int, default=14)
    ap.add_argument('--ch3_k', type=int, default=22)
    ap.add_argument('--cya_k', type=int, default=20)
    ap.add_argument('--cya_lead', type=int, default=22)
    ap.add_argument('--cxb_k', type=int, default=10)
    ap.add_argument('--pxb_k', type=int, default=2)
    ap.add_argument('--pb_pos', type=int, default=6)
    ap.add_argument('--pb_chk', type=int, default=30)
    ap.add_argument('--pxa_pos', type=int, default=12)
    ap.add_argument('--hb_pre', type=int, default=12)
    ap.add_argument('--w1_a', type=int, default=4)
    ap.add_argument('--w1_b', type=int, default=4)
    ap.add_argument('--w1_c', type=int, default=6)
    ap.add_argument('--w1_d', type=int, default=8)
    ap.add_argument('--pace', type=float, default=2.0)
    ap.add_argument('--verbose', action='store_true')
    ap.add_argument('--fine', type=int, default=-1)
    ap.add_argument('--both', action='store_true')
    ap.add_argument('--touch', type=int, default=0)
    ap.add_argument('--s2_k', type=lambda s: [int(x) for x in s.split(',')], default=[17, 8, 10, 8])
    ap.add_argument('--only', default='')
    ap.add_argument('--skip', default='')
    o = ap.parse_args()
    e = G(o)
    p0(e)
    e(f"s_lshl_b32 s{sT}, s{sJ}, 2\ns_add_u32 s{sT}, s{sT}, s{sW}\ns_mul_i32 s{sW1B}, s{sT}, 57344\ns_mul_i32 s{sWDB}, s{sDT}, 229376\ns_mul_i32 s{sT}, s{sW}, 57344\ns_add_u32 s{sWDB}, s{sWDB}, s{sT}\ns_add_u32 s{sWDB}, s{sWDB}, {WS_WD}\ns_mul_i32 s{sW7}, s{sW}, 7168")
    for pi in range(1, 4):
        e(f"s_add_u32 s{sT+5}, s{sW}, {pi}\ns_and_b32 s{sT+5}, s{sT+5}, 3\ns_mul_i32 s{sT+5}, s{sT+5}, 6144\ns_add_u32 s{sRW+pi-1}, s{sT+5}, {L_XT + (pi-1)*2048}")
    for g in a_preload(): e(g)
    e.stamp('p0end')
    e.dump_stamps(None, 0)
    done = False
    if o.stop == 'p0':
        e.dump_lds(0, 20480); e.end(); done = True
    if not done:
        e.inloop = True
        e("L_layer:\nLOOPB")
        W1c = Stream(8, sW1B, vL16, 'w1_')
        w1left = conv(e, W1c)
        if o.stop == 'conv1':
            e("LOOPE"); e.end(); done = True
    if not done:
        gemms(e, w1left, W1c)
        e.dump_stamps(sLAYER, 1)
        if o.stop == 'l1':
            e("LOOPE"); e.end(); done = True
    if not done:
        e(f"s_cmp_lg_u32 s{sLAYER}, 0\ns_cbranch_scc1 L_done")
        e(f"s_mov_b32 s{sLAYER}, 1\ns_mov_b32 s{sXMID}, {WS_X[3]}\ns_mov_b32 s{sHOFF}, {WS_H[1]}\ns_mov_b32 s{sFL}, {WS_FL[1]}\ns_mov_b32 s{sST2}, {WS_ST2[1]}\ns_mov_b32 s{sTGT}, 28")
        e("LOOPE\ns_branch L_layer")
        e("L_done:")
        e.end()
    helper(e)
    e(e.tail)
    e("L_exit:\ns_endpgm")
    L, errs = resolve(e.L)
    for x in errs[:20]: print("RESOLVE", x, file=sys.stderr)
    L = [('  ' + l if not l.endswith(':') else l) for l in L]
    lines, nins = hz.fix(L)
    errs = hz.check_waits(lines)
    for x in errs[:40]: print("WAITERR", x, file=sys.stderr)
    hdr = f"""; fused persistent kernel v2 (generated by dev/k2/gen2.py)
; @launch grid=({NALL},1,1) block=(256,1,1) lds={LDS_TOTAL}
.amdgcn_target "amdgcn-amd-amdhsa--gfx950"
.text
.globl {NAME}
.p2align 8
.type {NAME},@function
{NAME}:
"""
    ftr = f"""
.section .rodata,"a"
.p2align 6
.amdhsa_kernel {NAME}
  .amdhsa_next_free_vgpr 512
  .amdhsa_next_free_sgpr 102
  .amdhsa_accum_offset 256
  .amdhsa_group_segment_fixed_size 0
  .amdhsa_kernarg_size 112
  .amdhsa_user_sgpr_count 2
  .amdhsa_user_sgpr_kernarg_segment_ptr 1
  .amdhsa_system_sgpr_workgroup_id_x 1
.end_amdhsa_kernel
"""
    if o.stamps: print(';'.join(','.join(n) for n in e.names), file=sys.stderr)
    open(o.o, 'w').write(hdr + '\n'.join(lines) + ftr)
    print(f"wrote {o.o}: {len(lines)} lines, {nins} nop states inserted, {len(errs)} wait errors", file=sys.stderr)

if __name__ == '__main__':
    main()
```
